```python
import torch

def _softmax(x, axis=-1):
    return torch.softmax(x, dim=axis)

def _gelu(x):
    return torch.nn.functional.gelu(x, approximate='tanh')

def _silu(x):
    return torch.nn.functional.silu(x)

def _sigmoid(x):
    return torch.sigmoid(x)

def _layernorm(x, axis=-1, eps=1e-05):
    m = x.mean(dim=axis, keepdim=True)
    v = x.var(dim=axis, keepdim=True, unbiased=False)
    return (x - m) / torch.sqrt(v + eps)

def _scatter_add(tgt, idx, src, axis=0):
    return tgt.clone().index_add_(axis, idx, src)

def _segment_sum(src, seg, n):
    out = torch.zeros((n,) + src.shape[1:], dtype=src.dtype)
    return out.index_add_(0, seg, src)

def _pad(x, pw):
    flat = tuple((v for pair in reversed(pw) for v in pair))
    return torch.nn.functional.pad(x, flat)
kernel_name = 'adaLN_cond__gqa_block_cached__glu_gated_geglu__decode'

def setup_inputs():

    _w = lambda a: (lambda t: t.to(torch.bfloat16) if t.is_floating_point() else t)(torch.as_tensor(a))

    def _A_setup():
        B, Sq, D = (4, 1, 512)
        Hq, Hkv, Sk, Dh = (32, 32, 4096, 128)
        assert Hq % Hkv == 0, (Hq, Hkv)
        return {'x': _w((lambda *s: torch.randn(*s, dtype=torch.bfloat16) * 0.1)(B, Sq, D)), 'k_cache': _w((lambda *s: torch.randn(*s, dtype=torch.bfloat16) * 0.8)(B, Hkv, Sk, Dh)), 'v_cache': _w((lambda *s: torch.randn(*s, dtype=torch.bfloat16) * 3.2)(B, Hkv, Sk, Dh)), 'wq': _w((lambda *s: torch.randn(*s, dtype=torch.bfloat16) * 0.8)(D, Hq * Dh) * D ** (-0.5)), 'wo': _w((lambda *s: torch.randn(*s, dtype=torch.bfloat16) * 3.2)(Hq * Dh, D) * (Hq * Dh) ** (-0.5))}
    _A_in = _A_setup()

    def _B_setup():
        B, S, Dm, Df = (4, 1, 512, 1376)
        return {'x': _w((lambda *s: torch.randn(*s, dtype=torch.bfloat16) * 0.1)(B, S, Dm)), 'w_gate': _w((lambda *s: torch.randn(*s, dtype=torch.bfloat16) * 3.2)(Dm, Df) * Dm ** (-0.5)), 'w_up': _w((lambda *s: torch.randn(*s, dtype=torch.bfloat16) * 3.2)(Dm, Df) * Dm ** (-0.5)), 'w_down': _w((lambda *s: torch.randn(*s, dtype=torch.bfloat16) * 3.2)(Df, Dm) * Df ** (-0.5))}
    _B_in = _B_setup()
    return {'A_x': _A_in['x'], 'A_k_cache': _A_in['k_cache'], 'A_v_cache': _A_in['v_cache'], 'A_wq': _A_in['wq'], 'A_wo': _A_in['wo'], 'B_x': _B_in['x'], 'B_w_gate': _B_in['w_gate'], 'B_w_up': _B_in['w_up'], 'B_w_down': _B_in['w_down'], 'c': _w((lambda *s: torch.randn(*s, dtype=torch.bfloat16) * 0.4)(4, 512) * 8.0), 'w_mod': _w((lambda *s: torch.randn(*s, dtype=torch.bfloat16) * 0.4)(512, 6 * 512) * 512 ** (-0.5) * 8.0)}

def reference(A_x, A_k_cache, A_v_cache, A_wq, A_wo, B_x, B_w_gate, B_w_up, B_w_down, c, w_mod):

    def _A_ref(x, k_cache, v_cache, wq, wo):
        B, Sq, D = x.shape
        Hq, Dh = (32, 128)
        Hkv = k_cache.shape[1]
        rep = Hq // Hkv
        q = (lambda x, *d: x.permute(*d))((x @ wq).reshape(B, Sq, Hq, Dh), 0, 2, 1, 3)
        k = (lambda x, n, axis: torch.repeat_interleave(x, n, dim=axis))(k_cache, rep, axis=1)
        v = (lambda x, n, axis: torch.repeat_interleave(x, n, dim=axis))(v_cache, rep, axis=1)
        scores = torch.einsum('bhqd,bhkd->bhqk', q, k) * Dh ** (-0.5)
        p = _softmax(scores, axis=-1)
        o = torch.einsum('bhqk,bhkd->bhqd', p, v)
        return (lambda x, *d: x.permute(*d))(o, 0, 2, 1, 3).reshape(B, Sq, Hq * Dh) @ wo

    def _B_ref(x, w_gate, w_up, w_down):
        g = torch.einsum('bsd,df->bsf', x, w_gate)
        u = torch.einsum('bsd,df->bsf', x, w_up)
        h = _gelu(g) * u
        return torch.einsum('bsf,fd->bsd', h, w_down)
    x = A_x
    mod = (_silu(c) @ w_mod).reshape(c.shape[0], 6, 1, -1)
    sa, ca, ga, sb, cb, gb = (mod[:, 0].clone(), mod[:, 1].clone(), mod[:, 2].clone(), mod[:, 3].clone(), mod[:, 4].clone(), mod[:, 5].clone())
    h = _layernorm(x, axis=-1) * (1 + ca) + sa
    x = x + ga * _A_ref(h, A_k_cache, A_v_cache, A_wq, A_wo)
    h = _layernorm(x, axis=-1) * (1 + cb) + sb
    x = x + gb * _B_ref(h, B_w_gate, B_w_up, B_w_down)
    return x
```

```python
import re

_REG = re.compile(r"\b([vsa])\[(\d+):(\d+)\]|\b([vsa])(\d+)\b|\b(vcc|exec|m0|scc)\b")
TRANS = ("v_exp_f32", "v_log_f32", "v_rcp_f32", "v_rsq_f32", "v_sqrt_f32", "v_sin_f32", "v_cos_f32")

def regs_of(tok):
    out = set()
    for m in _REG.finditer(tok):
        if m.group(1):
            out |= {(m.group(1), i) for i in range(int(m.group(2)), int(m.group(3)) + 1)}
        elif m.group(4):
            out.add((m.group(4), int(m.group(5))))
        else:
            out.add((m.group(6), 0))
    return out

def split_ops(rest):
    ops, depth, cur = [], 0, ""
    for ch in rest:
        if ch == "[": depth += 1
        if ch == "]": depth -= 1
        if ch == "," and depth == 0:
            ops.append(cur.strip()); cur = ""
        else:
            cur += ch
    if cur.strip(): ops.append(cur.strip())
    return ops

class Ins:
    def __init__(self, text):
        self.text = text
        t = text.split(";")[0].strip()
        self.label = t.endswith(":")
        self.directive = t.startswith(".")
        self.mn = t.split()[0] if t else ""
        rest = t[len(self.mn):].strip()
        self.ops = split_ops(rest)
        mn = self.mn
        self.is_valu = mn.startswith("v_") and not mn.startswith("v_mfma")
        self.is_mfma = mn.startswith("v_mfma")
        self.is_salu = mn.startswith("s_")
        self.is_vmem = mn.startswith(("buffer_", "global_", "flat_"))
        self.is_ds = mn.startswith("ds_")
        self.is_dpp = "_dpp" in mn or "quad_perm" in t or "row_" in t
        self.is_trans = mn.replace("_e32", "").replace("_e64", "") in TRANS
        self.is_perml = mn.startswith("v_permlane")
        self.is_rdl = mn.startswith(("v_readlane", "v_readfirstlane"))
        self.lds_dma = self.is_vmem and (t.endswith(" lds") or " lds " in t or "_lds_" in mn)
        self.w, self.r = set(), set()
        self.srcc = set()
        self.store_data = set()
        first = [o.split()[0] if o else o for o in self.ops]
        allr = [regs_of(o.split(" ")[0]) if i == len(self.ops) - 1 and not o.startswith("-") else regs_of(o) for i, o in enumerate(self.ops)]
        allr = [regs_of(f) for f in first]
        if self.label or self.directive or not mn:
            return
        if self.is_mfma:
            self.w = allr[0]; self.r = allr[1] | allr[2] | allr[3]; self.srcc = allr[3]
            self.ab = allr[1] | allr[2]
        elif self.is_valu:
            self.w = set(allr[0])
            for x in allr[1:]: self.r |= x
            if self.is_perml:
                self.w |= allr[1]; self.r |= allr[0]
            if mn.startswith(("v_fmac", "v_dot2c", "v_pk_fmac", "v_mac")): self.r |= allr[0]
            if self.is_dpp: self.r |= allr[0]
            if mn.startswith(("v_add_co", "v_sub_co", "v_addc_co", "v_subb_co", "v_div_scale")):
                self.w |= allr[1]; self.r -= allr[1] if not mn.startswith(("v_addc", "v_subb")) else set()
            if mn.startswith("v_cndmask") and len(self.ops) == 3: self.r.add(("vcc", 0))
            if mn.startswith("v_cmpx"): self.w.add(("exec", 0))
        elif self.is_vmem:
            st = "store" in mn or ("atomic" in mn)
            if self.lds_dma:
                for x in allr: self.r |= x
                self.r.add(("m0", 0))
            elif "store" in mn:
                for x in allr: self.r |= x
                d = allr[0] if mn.startswith("buffer_") else allr[1]
                if len(d) >= 3: self.store_data = d
            elif "atomic" in mn:
                for x in allr: self.r |= x
                if "sc0" in t and mn.startswith("global_"): self.w = allr[0]
            elif mn.startswith(("buffer_inv", "buffer_wb")):
                pass
            else:
                self.w = allr[0]
                for x in allr[1:]: self.r |= x
                if "d16" in mn: self.r |= allr[0]
        elif self.is_ds:
            if "read" in mn or "_rtn" in mn or "permute" in mn or "swizzle" in mn:
                self.w = allr[0]
                for x in allr[1:]: self.r |= x
                if "d16" in mn: self.r |= allr[0]
            else:
                for x in allr: self.r |= x
        elif self.is_salu:
            if mn.startswith(("s_cmp", "s_bitcmp", "s_cbranch", "s_branch", "s_waitcnt", "s_nop", "s_barrier", "s_sleep", "s_endpgm", "s_setprio")):
                for x in allr: self.r |= x
            else:
                if allr: self.w = allr[0]
                for x in allr[1:]: self.r |= x
                if "saveexec" in mn: self.w.add(("exec", 0))
    def states(self):
        if self.label or self.directive or not self.mn: return 0
        if self.mn == "s_nop": return int(self.ops[0], 0) + 1
        return 1

def vg(s): return {x for x in s if x[0] in "va" and x[0] != "vcc"}
def sg(s): return {x for x in s if x[0] == "s" or x[0] == "vcc"}

def need(p, c):
    n = 0
    if p.is_valu:
        wv, ws_ = vg(p.w), sg(p.w)
        if c.is_valu and c.is_dpp and wv & c.r: n = max(n, 2)
        if c.is_perml and wv & c.r: n = max(n, 2)
        if c.is_mfma and wv & c.r: n = max(n, 2)
        if p.is_trans and (c.is_valu or c.is_mfma) and not c.is_trans and wv & c.r: n = max(n, 1)
        if p.is_trans and (c.is_vmem or c.is_ds) and wv & c.r: n = max(n, 1)
        if c.is_rdl and wv & c.r: n = max(n, 1)
        if ws_ & c.r:
            if c.is_valu: n = max(n, 4 if c.is_rdl or c.mn.startswith("v_writelane") else 2)
            if c.is_vmem: n = max(n, 5)
            if c.is_salu: n = max(n, 1)
        if ("exec", 0) in p.w:
            n = max(n, 5)
        if "sdwa" in p.mn or "op_sel" in p.text:
            if c.is_valu and wv & (c.r | c.w): n = max(n, 1)
        if p.mn.startswith("v_dot") and wv & (c.r | c.w) and c.mn != p.mn: n = max(n, 3)
    if p.is_mfma:
        big = "32x32" in p.mn
        if (c.is_valu or c.is_vmem or c.is_ds) and p.w & (c.r | c.w): n = max(n, 12 if big else 8)
        if c.is_mfma:
            if p.w & c.ab: n = max(n, 12 if big else 8)
            if p.w & c.srcc and p.w != c.srcc: n = max(n, 10 if big else 6)
            if p.w & c.w and not (p.w & c.srcc): n = max(n, 12 if big else 8)
        if c.is_valu and p.srcc & c.w: n = max(n, 7 if big else 3)
    if p.store_data and p.store_data & c.w: n = max(n, 2)
    if p.is_salu and ("m0", 0) in p.w and c.lds_dma: n = max(n, 1)
    return n

class Asm:
    def __init__(self):
        self.lines = []
        self.uid = 0
    def __call__(self, text):
        for t in text.split("\n"):
            t = t.strip()
            if t: self.lines.append(t)
    def label(self, base="L"):
        self.uid += 1
        return f"{base}_{self.uid}"
    def finish(self):
        ins = [Ins(t) for t in self.lines]
        out = []
        targets = {}
        def hist_before(idx_list, k):
            return idx_list[max(0, k - 24):k]
        for c in ins:
            if c.states() > 0:
                dist, req = 0, 0
                for p in reversed(out[-40:]):
                    if p.mn in ("s_branch", "s_endpgm"): break
                    req = max(req, need(p, c) - dist)
                    dist += p.states()
                    if dist > 20: break
                while req > 0:
                    k = min(req, 16)
                    out.append(Ins(f"s_nop {k-1}")); req -= k
            out.append(c)
        pos = {o.text.split(":")[0].strip(): i for i, o in enumerate(out) if o.label}
        probs = []
        for i, b in enumerate(out):
            if b.mn.startswith(("s_cbranch", "s_branch")) and b.ops and b.ops[0] in pos:
                j = pos[b.ops[0]]
                d0 = 1
                dist_c = 0
                for c in out[j:j+24]:
                    if c.states() == 0: continue
                    dist = d0 + dist_c
                    for p in reversed(out[max(0, i-24):i]):
                        if p.mn in ("s_branch", "s_endpgm"): break
                        if need(p, c) > dist: probs.append((p.text, b.text, c.text))
                        dist += p.states()
                        if dist > 20: break
                    dist_c += c.states()
                    if c.mn in ("s_branch", "s_endpgm") or dist_c > 20: break
        if probs:
            for p in probs: print("HAZARD across branch:", p)
            raise SystemExit("hazards across branches")
        txt = []
        for o in out:
            txt.append(o.text if (o.label or o.directive) else "    " + o.text)
        return "\n".join(txt) + "\n"
```

```python
import sys, math
from asmlib import Asm

KN = "adaLN_cond__gqa_block_cached__glu_gated_geglu__decode_kernel"
HEADER = open("adaLN_cond__gqa_block_cached__glu_gated_geglu__decode.s.ref").read().split("; Override launch")[0]

WS_EPOCH, WS_HG, WS_MOD, WS_ML, WS_X1, WS_HH, WS_Y, WS_TS, WS_END = 0, 0x1000, 0x4000, 0x10000, 0x20000, 0x24000, 0x40000, 0x100000, 0x200000
L_QP, L_P, L_ML, L_CNT, L_F, L_ST, L_OR, L_MODP, L_H2, L_T3, L_STG, L_END = 0, 2048, 10496, 10560, 10576, 10592, 10752, 13056, 15104, 19456, 32768, 98304
OR_STRIDE, H2_STRIDE = 272, 1040
LOG2E = 0x3fb8aa3b
SCALE = 0x3db504f3
SPIN = 1 << 17
ARRIVE = 256 + 64

def f2u(x):
    import struct
    return struct.unpack("<I", struct.pack("<f", x))[0]

def gen(D=8, DW=8, debug=False, wpol="", warm=True):
    a = Asm()
    nts = [0]
    def ts(k):
        if debug:
            a(f"s_memrealtime s[{72+2*k}:{73+2*k}]")
            a("s_waitcnt lgkmcnt(0)")
    def srd(base, ptr, size):
        a(f"s_mov_b32 s{base}, s{ptr}"); a(f"s_mov_b32 s{base+1}, s{ptr+1}")
        a(f"s_mov_b32 s{base+2}, {size}"); a(f"s_mov_b32 s{base+3}, 0x20000")
    def mask64(s, lo, hi=None):
        a(f"s_mov_b32 s{s}, {lo:#x}"); a(f"s_mov_b32 s{s+1}, {(lo if hi is None else hi):#x}")
    def bf16r(v):
        a(f"v_cvt_pk_bf16_f32 v{v}, v{v}, v{v}")
        a(f"v_and_b32 v{v}, 0xffff0000, v{v}")
    def allreduce(op, v, t):
        for r in (1, 2, 4, 8):
            a(f"{op}_dpp v{v}, v{v}, v{v} row_ror:{r} row_mask:0xf bank_mask:0xf")
        for sw in ("v_permlane16_swap_b32", "v_permlane32_swap_b32"):
            a(f"v_mov_b32 v{t}, v{v}")
            a(f"{sw} v{t}, v{v}")
            a(f"{op} v{v}, v{v}, v{t}")
    def fin():
        a("s_branch L_fin" if debug else "s_endpgm")
    WP = (" " + wpol) if wpol else ""
    P_X, P_K, P_V, P_WQ, P_WO, P_WG, P_WU, P_WD, P_C, P_WM, P_OUT, P_DBG, P_WS = 16, 18, 20, 22, 24, 28, 30, 32, 34, 36, 38, 40, 42
    SA, SB, SW = 44, 48, 52
    sa, sb_, sw = "s[44:47]", "s[48:51]", "s[52:55]"

    a("s_cmp_ge_u32 s2, 256")
    a("s_cbranch_scc1 L_exit")
    a("s_load_dwordx16 s[16:31], s[0:1], 0")
    a("s_load_dwordx8 s[32:39], s[0:1], 64")
    a("s_load_dwordx4 s[40:43], s[0:1], 96")
    if debug:
        for k in range(12): a(f"s_mov_b32 s{72+2*k}, 0")
    a("v_lshrrev_b32 v1, 6, v0")
    a("v_and_b32 v0, 63, v0")
    a("v_readfirstlane_b32 s3, v1")
    a("s_and_b32 s8, s2, 7")
    a("s_lshr_b32 s9, s2, 3")
    a("s_lshr_b32 s4, s9, 3")
    a("s_lshl_b32 s4, s4, 3")
    a("s_add_u32 s4, s4, s8")
    a("s_bfe_u32 s5, s9, 0x20001")
    a("s_and_b32 s6, s9, 1")
    a("v_lshrrev_b32 v30, 4, v0")
    a("v_and_b32 v31, 15, v0")
    a("s_cmp_ge_u32 s3, 4")
    a("s_cbranch_scc1 L_service")

    a("v_lshrrev_b32 v3, 2, v31")
    a("v_and_b32 v4, 3, v31")
    a("v_lshlrev_b32 v1, 8, v3")
    a("v_lshl_add_u32 v1, v4, 4, v1")
    a("v_lshl_add_u32 v1, v30, 6, v1")
    a("v_lshlrev_b32 v2, 4, v0")
    a("s_lshl_b32 s57, s5, 5")
    a("s_add_u32 s57, s57, s4")
    a("s_lshl_b32 s57, s57, 20")
    a("s_lshl_b32 s10, s6, 19")
    a("s_add_u32 s57, s57, s10")
    a("s_lshl_b32 s10, s3, 12")
    a("s_add_u32 s57, s57, s10")
    a("s_mov_b32 s58, s57")
    a("s_waitcnt lgkmcnt(0)")
    ts(0)
    srd(SA, P_K, 128 << 20); srd(SB, P_V, 128 << 20)
    NSLOT = 48
    def slot(q):
        return 64 + 4 * ((q % NSLOT) if q < 128 else 32 + (q - 128) % D)
    def issue(q, wait=True):
        if wait: a(f"s_waitcnt vmcnt({D-1})")
        r = q & 3
        off = f" offset:{r*1024}" if r else ""
        s = slot(q)
        if q < 128:
            a(f"buffer_load_dwordx4 v[{s}:{s+3}], v1, {sa}, s57 offen{off} nt")
            if r == 3: a("s_add_u32 s57, s57, 16384")
        else:
            a(f"buffer_load_dwordx4 v[{s}:{s+3}], v2, {sb_}, s58 offen{off} nt")
            if r == 3: a("s_add_u32 s58, s58, 16384")
    for q in range(D): issue(q, wait=False)
    for j in range(4): mask64(60 + 2 * j, (0x000F000F << (4 * j)))
    mask64(68, 0xAAAAAAAA); mask64(70, 0xCCCCCCCC)
    a("v_lshlrev_b32 v29, 5, v4")
    a("v_lshl_add_u32 v29, v30, 7, v29")
    a("s_lshl_b32 s10, s3, 11")
    a(f"s_add_u32 s10, s10, {L_P}")
    a("v_lshlrev_b32 v28, 6, v4")
    a("v_lshl_add_u32 v28, v30, 4, v28")
    a("v_lshl_add_u32 v28, v3, 2, v28")
    a("v_add_u32 v56, s10, v28")
    a("v_lshl_add_u32 v3, v30, 4, s10")
    a("v_and_b32 v8, 1, v31")
    a("v_cmp_eq_u32 vcc, 1, v8")
    a("v_mov_b32 v9, 0xffff")
    a("v_mov_b32 v10, 0xffff0000")
    a("v_cndmask_b32 v9, v9, v10, vcc")
    a("v_bfe_u32 v8, v31, 1, 2")
    for w in range(4):
        a(f"v_cmp_eq_u32 vcc, {w}, v8")
        a(f"v_cndmask_b32 v{4+w}, 0, v9, vcc")
    a("v_mov_b32 v57, 0xff800000")
    a("s_barrier")
    PRE = NSLOT - 4
    for q in range(D, PRE): issue(q)
    ts(1)
    a("s_barrier")
    ts(2)
    for w in range(4):
        a(f"ds_read_b128 v[{32+8*w}:{35+8*w}], v29 offset:{L_QP + w*512}") if w < 3 else a(f"ds_read_b128 v[8:11], v29 offset:{L_QP + w*512}")
        a(f"ds_read_b128 v[{36+8*w}:{39+8*w}], v29 offset:{L_QP + w*512 + 16}") if w < 3 else a(f"ds_read_b128 v[12:15], v29 offset:{L_QP + w*512 + 16}")
    issue(PRE)
    a("s_waitcnt lgkmcnt(0)")
    for i in range(8):
        a(f"v_add_f32 v{32+i}, v{32+i}, v{40+i}")
        a(f"v_add_f32 v{8+i}, v{8+i}, v{48+i}")
    for i in range(8):
        a(f"v_add_f32 v{8+i}, v{8+i}, v{32+i}")
    for i in range(4):
        a(f"v_cvt_pk_bf16_f32 v{24+i}, v{8+2*i}, v{9+2*i}")
    for j in range(4):
        for i in range(4):
            a(f"v_cndmask_b32 v{32+4*j+i}, 0, v{24+i}, s[{60+2*j}:{61+2*j}]")
    a(f"s_mov_b32 s59, {SCALE:#x}")
    def consume(q):
        t, j = q >> 2, q & 3
        acc = 8 + 4 * (t & 3)
        s = slot(q)
        c = "0" if j == 0 else f"v[{acc}:{acc+3}]"
        a(f"v_mfma_f32_16x16x32_bf16 v[{acc}:{acc+3}], v[{s}:{s+3}], v[{32+4*j}:{35+4*j}], {c}")
        if (q & 15) == 15:
            u = q >> 4
            for i in range(4):
                a(f"v_mov_b32_dpp v{24+i}, v{8+4*i} quad_perm:[0,0,0,0] row_mask:0xf bank_mask:0xf")
            for r in (1, 2, 3):
                for i in range(4):
                    a(f"v_add_f32_dpp v{24+i}, v{8+4*i+r}, v{24+i} quad_perm:[{r},{r},{r},{r}] row_mask:0xf bank_mask:0xf")
            a("v_cndmask_b32 v24, v24, v25, s[68:69]")
            a("v_cndmask_b32 v26, v26, v27, s[68:69]")
            a("v_cndmask_b32 v24, v24, v26, s[70:71]")
            bf16r(24)
            a("v_mul_f32 v24, s59, v24")
            a(f"v_cvt_pk_bf16_f32 v24, v24, v24")
            a(f"v_and_b32 v{48+u}, 0xffff0000, v24")
            a(f"v_max_f32 v57, v57, v{48+u}")
    issued, consumed = PRE + 1, 0
    while consumed < 128:
        landed = issued - D
        n = 0
        while consumed < min(landed, 128) and n < 12:
            consume(consumed); consumed += 1; n += 1
        if issued < 128 + D:
            assert issued >= 128 or consumed > issued - NSLOT
            issue(issued); issued += 1
    ts(3)
    allreduce("v_max_f32", 57, 24)
    a(f"s_mov_b32 s59, {LOG2E:#x}")
    a("v_mul_f32 v25, s59, v57")
    for u in range(8):
        a(f"v_fma_f32 v{48+u}, v{48+u}, s59, -v25")
    for u in range(8):
        a(f"v_exp_f32 v{48+u}, v{48+u}")
    for u in range(8):
        a(f"v_cvt_pk_bf16_f32 v{8+u}, v{48+u}, v{48+u}")
        a(f"ds_write_b32 v56, v{8+u} offset:{u*256}")
    a("ds_read_b128 v[12:15], v3")
    a("ds_read_b128 v[16:19], v3 offset:64")
    a("v_add_f32 v48, v48, v49"); a("v_add_f32 v50, v50, v51"); a("v_add_f32 v52, v52, v53"); a("v_add_f32 v54, v54, v55")
    a("v_add_f32 v48, v48, v50"); a("v_add_f32 v52, v52, v54"); a("v_add_f32 v58, v48, v52")
    allreduce("v_add_f32", 58, 24)
    a("v_mov_b32 v26, v57"); a("v_mov_b32 v27, v58")
    a("s_lshl_b32 s10, s3, 3")
    a("v_mov_b32 v24, s10")
    a("v_mov_b32 v25, 1")
    a(f"ds_write_b64 v24, v[26:27] offset:{L_ML}")
    a("v_mov_b32 v24, 0")
    a("s_mov_b64 exec, 1")
    a(f"ds_add_u32 v24, v25 offset:{L_CNT+4}")
    a("s_mov_b64 exec, -1")
    a("s_waitcnt lgkmcnt(0)")
    for j in range(4):
        for w in range(4):
            a(f"v_and_b32 v{32+4*j+w}, v{12+j}, v{4+w}")
    for i in range(4): a(f"v_mov_b32 v{8+i}, 0")
    a("v_add_u32 v3, 128, v3")
    ts(4)
    def vstep(v, rel, load, waitn, build):
        t, j = v >> 2, v & 3
        ab, ob = 32 + 16 * (t & 1), 32 + 16 * ((t + 1) & 1)
        ppn, ppf = 12 + 4 * ((t + 1) & 1), 12 + 4 * (t & 1)
        s = slot(128 + v)
        if j == 0 and build:
            a("s_waitcnt lgkmcnt(0)")
            a(f"ds_read_b128 v[{ppf}:{ppf+3}], v3 offset:{rel*64}")
        a(f"s_waitcnt vmcnt({waitn})")
        a(f"v_mfma_f32_16x16x32_bf16 v[8:11], v[{ab+4*j}:{ab+4*j+3}], v[{s}:{s+3}], v[8:11]")
        if load: issue(128 + v + D, wait=False)
        if build:
            for w in range(4):
                a(f"v_and_b32 v{ob+4*j+w}, v{ppn+j}, v{4+w}")
    UL = D * 8 // math.gcd(D, 8)
    nit = (128 - D) // UL
    a(f"s_mov_b32 s11, {nit}")
    a("L_vloop:")
    for v in range(UL): vstep(v, v >> 2, True, D - 1, True)
    a(f"v_add_u32 v3, {UL//4*64}, v3")
    a("s_sub_u32 s11, s11, 1")
    a("s_cmp_lg_u32 s11, 0")
    a("s_cbranch_scc1 L_vloop")
    base = nit * UL
    a("s_lshl_b32 s10, s3, 2")
    a("v_mov_b32 v24, s10")
    a(f"s_mov_b32 s11, {SPIN}")
    a("L_fwait:")
    a(f"ds_read_b32 v25, v24 offset:{L_F}")
    a("s_waitcnt lgkmcnt(0)")
    a("v_cmp_ne_u32 vcc, -1, v25")
    a("s_cbranch_vccnz L_fok")
    a("s_sleep 2")
    a("s_sub_u32 s11, s11, 1")
    a("s_cmp_lg_u32 s11, 0")
    a("s_cbranch_scc1 L_fwait")
    a("L_fok:")
    a("v_and_b32 v26, 1, v30")
    a("v_lshlrev_b32 v26, 3, v26")
    a("v_lshl_add_u32 v26, v31, 4, v26")
    a(f"s_mul_i32 s10, s3, {OR_STRIDE}")
    a("v_add_u32 v26, s10, v26")
    for v in range(base, 128):
        ld = v + D < 128
        vstep(v, (v - base) >> 2, ld, D - 1 if ld else 127 - v, v < 124)
    ts(5)
    for i in range(4): a(f"v_mul_f32 v{8+i}, v{8+i}, v25")
    a("v_cvt_pk_bf16_f32 v12, v8, v9")
    a("v_cvt_pk_bf16_f32 v13, v10, v11")
    a(f"ds_write_b64 v26, v[12:13] offset:{L_OR}")
    a("v_lshlrev_b32 v14, 16, v12"); a("v_and_b32 v15, 0xffff0000, v12")
    a("v_lshlrev_b32 v16, 16, v13"); a("v_and_b32 v17, 0xffff0000, v13")
    for i in range(4): a(f"v_sub_f32 v{8+i}, v{8+i}, v{14+i}")
    a("v_cvt_pk_bf16_f32 v18, v8, v9")
    a("v_cvt_pk_bf16_f32 v19, v10, v11")
    a(f"ds_write_b64 v26, v[18:19] offset:{L_OR + 4*OR_STRIDE}")
    a("s_waitcnt lgkmcnt(0)")
    a("s_barrier")
    a("s_cmp_lg_u32 s3, 0")
    a("s_cbranch_scc1 L_done")
    a("s_cmp_ge_u32 s2, 128")
    a("s_cbranch_scc1 L_done")
    srd(SW, P_WS, WS_END)
    srd(SA, P_X, 4096)
    a("s_lshr_b32 s12, s2, 5")
    a("s_and_b32 s13, s2, 31")
    a("v_lshrrev_b32 v1, 2, v0")
    a("v_lshlrev_b32 v1, 11, v1")
    a("v_and_b32 v2, 3, v0")
    a("v_lshl_add_u32 v1, v2, 4, v1")
    a("s_lshl_b32 s10, s12, 17")
    a("s_lshl_b32 s11, s13, 6")
    a("s_add_u32 s10, s10, s11")
    a(f"s_add_u32 s60, s10, {WS_Y}")
    for u in (1, 2, 3): a(f"s_add_u32 s{60+u}, s60, {u*32768}")
    a("v_lshrrev_b32 v3, 1, v30")
    a("v_and_b32 v4, 1, v30")
    a("v_lshl_add_u32 v3, v4, 1, v3")
    a("v_lshl_add_u32 v3, v2, 2, v3")
    a("v_lshlrev_b32 v4, 2, v3")
    a("v_lshlrev_b32 v5, 1, v3")
    a("s_lshl_b32 s10, s12, 13")
    a("s_add_u32 s10, s10, s11")
    a(f"s_add_u32 s10, s10, {WS_MOD}")
    a(f"buffer_load_dword v6, v4, {sw}, s10 offen sc1")
    a("s_lshl_b32 s10, s12, 10")
    a("s_lshl_b32 s14, s13, 5")
    a("s_add_u32 s10, s10, s14")
    a(f"buffer_load_ushort v7, v5, {sa}, s10 offen")
    a(f"s_mov_b32 s15, {SPIN}")
    a("L_t1poll:")
    for u in range(4):
        a(f"buffer_load_dwordx4 v[{8+4*u}:{11+4*u}], v1, {sw}, s{60+u} offen sc1")
    a("s_waitcnt vmcnt(0)")
    a("v_max3_u32 v24, v8, v9, v10"); a("v_max3_u32 v25, v11, v12, v13"); a("v_max3_u32 v26, v14, v15, v16")
    a("v_max3_u32 v27, v17, v18, v19"); a("v_max3_u32 v28, v20, v21, v22")
    a("v_max3_u32 v24, v24, v25, v26"); a("v_max3_u32 v27, v27, v28, v23"); a("v_max_u32 v24, v24, v27")
    a("v_cmp_eq_u32 vcc, -1, v24")
    a("s_cbranch_vccz L_t1ok")
    a("s_mov_b64 exec, vcc")
    a("s_sub_u32 s15, s15, 1")
    a("s_cmp_lg_u32 s15, 0")
    a("s_cbranch_scc1 L_t1poll")
    a("L_t1ok:")
    a("s_mov_b64 exec, -1")
    ts(6)
    a("s_cmp_lt_u32 s2, 43")
    a("s_cbranch_scc1 L_t1bar")
    a("s_and_b32 s10, s2, 0xe0")
    a("s_cmp_lg_u32 s10, 64")
    a("s_cbranch_scc1 L_t1nobar")
    a("L_t1bar:")
    a("s_barrier")
    a("L_t1nobar:")
    for i in range(4):
        a(f"v_add_f32 v{8+i}, v{8+i}, v{12+i}")
        a(f"v_add_f32 v{16+i}, v{16+i}, v{20+i}")
    for i in range(4): a(f"v_add_f32 v{8+i}, v{8+i}, v{16+i}")
    a("v_permlane32_swap_b32 v8, v9")
    a("v_permlane32_swap_b32 v10, v11")
    a("v_add_f32 v8, v8, v9")
    a("v_add_f32 v10, v10, v11")
    a("v_permlane16_swap_b32 v8, v10")
    a("v_add_f32 v8, v8, v10")
    a("v_add_f32_dpp v8, v8, v8 row_ror:4 row_mask:0xf bank_mask:0xf")
    a("v_add_f32_dpp v8, v8, v8 row_ror:8 row_mask:0xf bank_mask:0xf")
    bf16r(8)
    a("v_mul_f32 v8, v8, v6")
    bf16r(8)
    a("v_lshlrev_b32 v7, 16, v7")
    a("v_add_f32 v8, v8, v7")
    bf16r(8)
    a("s_lshl_b32 s10, s12, 11")
    a("s_add_u32 s10, s10, s11")
    a(f"s_add_u32 s10, s10, {WS_X1}")
    a("s_mov_b32 exec_lo, 0x000f000f"); a("s_mov_b32 exec_hi, 0x000f000f")
    a(f"buffer_store_dword v8, v4, {sw}, s10 offen sc1")
    ts(7)
    a("L_done:")
    fin()

    a("L_service:")
    a("s_sub_u32 s7, s3, 4")
    a("s_mov_b32 s62, 0x05040100"); a("s_mov_b32 s63, 0x07060302")
    a("s_mov_b32 s12, 0")
    a("s_cmp_ge_u32 s2, 128")
    a("s_cbranch_scc1 L_norole")
    a("s_cmp_ge_u32 s8, 6")
    a("s_cbranch_scc1 L_norole")
    a("s_cmp_lt_u32 s8, 2")
    a("s_cselect_b32 s12, 1, 2")
    a("L_norole:")
    a("v_lshlrev_b32 v1, 16, v30")
    a("v_lshl_add_u32 v1, v31, 4, v1")
    a("s_waitcnt lgkmcnt(0)")
    ts(0)
    a("s_load_dword s56, s[42:43], 0")
    srd(SW, P_WS, WS_END)
    a("s_cmp_eq_u32 s12, 0")
    a("s_cbranch_scc1 L_noprod1")
    a("s_lshl_b32 s13, s8, 4")
    a("s_add_u32 s13, s13, s9")
    a("s_lshl_b32 s14, s13, 4")
    a("s_lshl_b32 s15, s13, 5")
    a("s_cmp_eq_u32 s12, 1")
    a("s_cselect_b32 s14, s14, s15")
    a("s_cselect_b32 s15, 1024, 32")
    srd(SA, P_C, 4096)
    srd(SB, P_X, 4096)
    a("v_and_b32 v2, 3, v31")
    a("v_lshlrev_b32 v2, 10, v2")
    a("v_lshrrev_b32 v3, 2, v31")
    a("v_lshl_add_u32 v2, v3, 6, v2")
    a("v_lshl_add_u32 v2, v30, 4, v2")
    a("s_lshl_b32 s10, s7, 8")
    a(f"buffer_load_dwordx4 v[16:19], v2, {sa}, s10 offen")
    a("v_lshlrev_b32 v2, 4, v0")
    a("s_lshl_b32 s10, s7, 10")
    a(f"buffer_load_dwordx4 v[20:23], v2, {sb_}, s10 offen")
    a("v_lshlrev_b32 v2, 10, v30")
    a("v_lshl_add_u32 v2, v31, 1, v2")
    a("s_and_b32 s10, s14, 511")
    a("s_lshl_b32 s10, s10, 1")
    a(f"buffer_load_ushort v24, v2, {sb_}, s10 offen")
    srd(SA, P_WM, 512 * 6144)
    a("v_mul_u32_u24 v2, 49152, v30")
    a("v_and_b32 v3, 7, v31")
    a("v_lshl_add_u32 v2, v3, 2, v2")
    a("v_lshrrev_b32 v3, 3, v31")
    a("v_mul_u32_u24 v3, s15, v3")
    a("v_add_u32 v2, v2, v3")
    a(f"s_mul_i32 s10, s7, {128*6144}")
    a("s_lshl_b32 s11, s14, 1")
    a("s_add_u32 s10, s10, s11")
    for ks in range(4):
        for e in range(8):
            a(f"buffer_load_dword v{32+ks*8+e}, v2, {sa}, s10 offen{WP}")
            a(f"s_add_u32 s10, s10, {6144 if e < 7 else 6144*25}")
    a("L_noprod1:")
    srd(SA, P_WQ, 512 * 8192)
    a("s_lshl_b32 s57, s7, 20")
    a("s_lshl_b32 s10, s4, 8")
    a("s_add_u32 s57, s57, s10")
    RG = lambda i: 96 + 32 * i
    def wq_issue(i):
        ks, e = i >> 3, i & 7
        r = RG(ks + 1) + 4 * e
        a(f"buffer_load_dwordx4 v[{r}:{r+3}], v1, {sa}, s57 offen{WP}")
        a(f"s_add_u32 s57, s57, {8192 if e < 7 else 8192*25}")
    for i in range(DW): wq_issue(i)
    a("v_mov_b32 v4, 0"); a("v_mov_b32 v5, 0"); a("v_mov_b32 v8, -1"); a("v_mov_b32 v9, -1"); a("v_mov_b32 v10, -1"); a("v_mov_b32 v11, -1")
    a(f"ds_write_b64 v4, v[4:5] offset:{L_CNT}")
    a(f"ds_write_b128 v4, v[8:11] offset:{L_F}")
    a("s_waitcnt lgkmcnt(0)")
    a("s_barrier")
    a("s_mul_i32 s56, s56, 1664525")
    a("s_add_u32 s56, s56, 1013904223")
    a("s_cmp_eq_u32 s12, 0")
    a("s_cbranch_scc1 L_noprod2")
    a(f"s_waitcnt vmcnt({DW+32+1})")
    a(f"s_mov_b32 s59, {f2u(-1.4426950408889634):#x}")
    for i in range(4):
        a(f"v_lshlrev_b32 v{64+2*i}, 16, v{16+i}"); a(f"v_and_b32 v{65+2*i}, 0xffff0000, v{16+i}")
        a(f"v_lshlrev_b32 v{80+2*i}, 16, v{20+i}"); a(f"v_and_b32 v{81+2*i}, 0xffff0000, v{20+i}")
    for i in range(8): a(f"v_mul_f32 v{72+i}, s59, v{64+i}")
    for i in range(8): a(f"v_exp_f32 v{72+i}, v{72+i}")
    for i in range(8): a(f"v_add_f32 v{72+i}, 1.0, v{72+i}")
    for i in range(8): a(f"v_rcp_f32 v{72+i}, v{72+i}")
    for i in range(8): a(f"v_mul_f32 v{64+i}, v{64+i}, v{72+i}")
    for i in range(4): a(f"v_cvt_pk_bf16_f32 v{4+i}, v{64+2*i}, v{65+2*i}")
    for q in (1, 2, 3):
        for i in range(4):
            a(f"v_mov_b32_dpp v{4+4*q+i}, v{4+i} row_shl:{4*q} row_mask:0xf bank_mask:0xf")
    def ln_stats(x0, t0, vm, vs, tmp):
        a(f"v_add_f32 v{t0}, v{x0}, v{x0+1}"); a(f"v_add_f32 v{t0+1}, v{x0+2}, v{x0+3}")
        a(f"v_add_f32 v{t0+2}, v{x0+4}, v{x0+5}"); a(f"v_add_f32 v{t0+3}, v{x0+6}, v{x0+7}")
        a(f"v_add_f32 v{t0}, v{t0}, v{t0+1}"); a(f"v_add_f32 v{t0+2}, v{t0+2}, v{t0+3}")
        a(f"v_add_f32 v{vm}, v{t0}, v{t0+2}")
        allreduce("v_add_f32", vm, tmp)
        a(f"v_mul_f32 v{vm}, {f2u(1/512):#x}, v{vm}")
        for i in range(8): a(f"v_sub_f32 v{t0+i}, v{x0+i}, v{vm}")
        a(f"v_mul_f32 v{vs}, v{t0}, v{t0}"); a(f"v_mul_f32 v{tmp}, v{t0+1}, v{t0+1}")
        for i in (2, 4, 6):
            a(f"v_fmac_f32 v{vs}, v{t0+i}, v{t0+i}"); a(f"v_fmac_f32 v{tmp}, v{t0+i+1}, v{t0+i+1}")
        a(f"v_add_f32 v{vs}, v{vs}, v{tmp}")
        allreduce("v_add_f32", vs, tmp)
        bf16r(vm)
        a(f"v_mul_f32 v{vs}, {f2u(1/512):#x}, v{vs}")
        bf16r(vs)
        a(f"v_add_f32 v{vs}, {f2u(1e-5):#x}, v{vs}")
        bf16r(vs)
        a(f"v_sqrt_f32 v{vs}, v{vs}")
        bf16r(vs)
    ln_stats(80, 88, 26, 27, 25)
    a("s_lshl_b32 s10, s7, 3")
    a("v_mov_b32 v25, s10")
    a(f"ds_write_b64 v25, v[26:27] offset:{L_ST}")
    for ks in range(4):
        a(f"s_waitcnt vmcnt({DW + 8*(3-ks)})")
        for c in range(2):
            for t in range(4):
                a(f"v_perm_b32 v{64+ks*8+c*4+t}, v{32+ks*8+2*t+1}, v{32+ks*8+2*t}, s{62+c}")
        for c in range(2):
            cc = "0" if ks == 0 else f"v[{20+4*c}:{23+4*c}]" if c == 0 else f"v[{96}:{99}]"
            d = f"v[20:23]" if c == 0 else "v[96:99]"
            a(f"v_mfma_f32_16x16x32_bf16 {d}, v[{4+4*ks}:{7+4*ks}], v[{64+ks*8+c*4}:{67+ks*8+c*4}], {cc}")
    a("s_lshl_b32 s10, s7, 9")
    a("v_lshl_add_u32 v25, v31, 5, s10")
    a("s_mov_b64 exec, 0xffff")
    a(f"ds_write_b128 v25, v[20:23] offset:{L_MODP}")
    a(f"ds_write_b128 v25, v[96:99] offset:{L_MODP+16}")
    a("s_mov_b64 exec, 1")
    a("v_mov_b32 v26, 0"); a("v_mov_b32 v27, 1")
    a(f"ds_add_rtn_u32 v26, v26, v27 offset:{L_CNT}")
    a("s_mov_b64 exec, -1")
    a("s_waitcnt lgkmcnt(0)")
    a("v_readfirstlane_b32 s10, v26")
    a("s_cmp_lg_u32 s10, 3")
    a("s_cbranch_scc1 L_noprod2")
    a("v_lshlrev_b32 v25, 4, v31")
    a("v_lshl_add_u32 v25, v30, 2, v25")
    a(f"v_add_u32 v25, {L_MODP}, v25")
    for w in range(4):
        a(f"ds_read2st64_b32 v[{4+2*w}:{5+2*w}], v25 offset0:{2*w} offset1:{2*w+1}")
    a("v_lshlrev_b32 v26, 3, v30")
    a(f"ds_read_b64 v[12:13], v26 offset:{L_ST}")
    a("s_waitcnt lgkmcnt(0)")
    a("v_add_f32 v4, v4, v6"); a("v_add_f32 v5, v5, v7"); a("v_add_f32 v8, v8, v10"); a("v_add_f32 v9, v9, v11")
    a("v_add_f32 v4, v4, v8"); a("v_add_f32 v5, v5, v9")
    bf16r(4); bf16r(5)
    a("s_cmp_eq_u32 s12, 1")
    a("s_cbranch_scc0 L_modfin")
    a("v_lshlrev_b32 v24, 16, v24")
    a("v_rcp_f32 v13, v13")
    a("v_sub_f32 v24, v24, v12")
    a("v_add_f32 v5, 1.0, v5")
    bf16r(24); bf16r(5)
    a("v_mul_f32 v24, v24, v13")
    bf16r(24)
    a("v_mul_f32 v24, v24, v5")
    bf16r(24)
    a("v_add_f32 v24, v24, v4")
    a("v_mov_b32_dpp v6, v24 quad_perm:[1,0,3,2] row_mask:0xf bank_mask:0xf")
    a("v_cvt_pk_bf16_f32 v6, v24, v6")
    a("v_mov_b32 v7, s56")
    a("v_lshlrev_b32 v8, 11, v30")
    a("v_lshl_add_u32 v8, v31, 2, v8")
    a("s_lshl_b32 s10, s13, 6")
    a(f"s_add_u32 s10, s10, {WS_HG}")
    a("s_mov_b32 exec_lo, 0x55555555"); a("s_mov_b32 exec_hi, 0x55555555")
    a(f"buffer_store_dwordx2 v[6:7], v8, {sw}, s10 offen sc1")
    a("s_mov_b64 exec, -1")
    ts(1)
    a("s_branch L_prodst")
    a("L_modfin:")
    a("s_lshr_b32 s10, s13, 4")
    a("s_cmp_lg_u32 s10, 4")
    a("s_cbranch_scc1 L_modst")
    a("v_add_f32 v4, 1.0, v4"); a("v_add_f32 v5, 1.0, v5")
    bf16r(4); bf16r(5)
    a("L_modst:")
    a("v_lshlrev_b32 v8, 13, v30")
    a("v_lshl_add_u32 v8, v31, 2, v8")
    a("s_lshl_b32 s10, s13, 7")
    a(f"s_add_u32 s10, s10, {WS_MOD - 4096}")
    a(f"buffer_store_dword v4, v8, {sw}, s10 offen sc1")
    a(f"buffer_store_dword v5, v8, {sw}, s10 offen offset:64 sc1")
    a("s_waitcnt vmcnt(0)")
    a("v_mov_b32 v4, 0"); a("v_mov_b32 v5, 1")
    a("s_mov_b64 exec, 1")
    a("global_atomic_add v4, v5, s[40:41] sc1")
    a("s_mov_b64 exec, -1")
    a("L_prodst:")
    a("s_waitcnt vmcnt(0)")
    a("L_noprod2:")
    def perms(ks):
        for c in range(8):
            for t in range(4):
                a(f"v_perm_b32 v{RG(ks)+c*4+t}, v{RG(ks+1)+4*(2*t+1)+(c>>1)}, v{RG(ks+1)+4*(2*t)+(c>>1)}, s{62+(c&1)}")
    def stream_w(issue_fn, first):
        done = 0
        for i in range(first, 32):
            a(f"s_waitcnt vmcnt({DW-1})")
            issue_fn(i)
            landed = i + 1 - DW
            while (done + 1) * 8 <= landed:
                perms(done); done += 1
        return done
    done = stream_w(wq_issue, DW)
    a("s_cmp_lg_u32 s7, 0")
    a("s_cbranch_scc1 L_noreset")
    a("v_mov_b32 v8, -1"); a("v_mov_b32 v9, -1"); a("v_mov_b32 v10, -1"); a("v_mov_b32 v11, -1")
    a("v_lshlrev_b32 v2, 4, v0")
    a("s_lshl_b32 s10, s5, 17")
    a("s_lshl_b32 s11, s4, 12")
    a("s_add_u32 s10, s10, s11")
    a("s_lshl_b32 s11, s6, 11")
    a("s_add_u32 s10, s10, s11")
    a(f"s_add_u32 s10, s10, {WS_Y}")
    a(f"buffer_store_dwordx4 v[8:11], v2, {sw}, s10 offen sc1")
    a(f"buffer_store_dwordx4 v[8:11], v2, {sw}, s10 offen offset:1024 sc1")
    a("s_mov_b64 exec, 1")
    a("s_lshl_b32 s10, s2, 7")
    a(f"s_add_u32 s10, s10, {WS_ML}")
    a(f"buffer_store_dwordx4 v[8:11], v2, {sw}, s10 offen sc1")
    a("s_mov_b64 exec, 15")
    a("s_lshl_b32 s10, s2, 6")
    a(f"s_add_u32 s10, s10, {WS_X1}")
    a(f"buffer_store_dwordx4 v[8:11], v2, {sw}, s10 offen sc1")
    a(f"s_add_u32 s10, s10, {WS_HH - WS_X1}")
    a(f"buffer_store_dwordx4 v[8:11], v2, {sw}, s10 offen sc1")
    a("s_mov_b64 exec, -1")
    a("L_noreset:")
    a("v_and_b32 v2, 3, v31")
    a("v_lshlrev_b32 v2, 7, v2")
    a("v_lshl_add_u32 v2, v30, 5, v2")
    a("s_lshl_b32 s10, s5, 11")
    a("s_lshl_b32 s11, s7, 9")
    a("s_add_u32 s10, s10, s11")
    a(f"s_add_u32 s10, s10, {WS_HG}")
    a(f"s_mov_b32 s15, {SPIN}")
    a(f"buffer_load_dwordx4 v[4:7], v2, {sw}, s10 offen sc1")
    a(f"buffer_load_dwordx4 v[8:11], v2, {sw}, s10 offen offset:16 sc1")
    a("s_waitcnt vmcnt(2)")
    while done < 4:
        perms(done); done += 1
    ts(2)
    a("s_branch L_hchk")
    a("L_hpoll:")
    a(f"buffer_load_dwordx4 v[4:7], v2, {sw}, s10 offen sc1")
    a(f"buffer_load_dwordx4 v[8:11], v2, {sw}, s10 offen offset:16 sc1")
    a("L_hchk:")
    a("s_waitcnt vmcnt(0)")
    a("v_xor_b32 v12, s56, v5"); a("v_xor_b32 v13, s56, v7"); a("v_xor_b32 v14, s56, v9"); a("v_xor_b32 v15, s56, v11")
    a("v_or3_b32 v12, v12, v13, v14")
    a("v_or_b32 v12, v12, v15")
    a("v_cmp_ne_u32 vcc, 0, v12")
    a("s_cbranch_vccz L_hok")
    a("s_sub_u32 s15, s15, 1")
    a("s_cmp_lg_u32 s15, 0")
    a("s_cbranch_scc1 L_hpoll")
    a("L_hok:")
    ts(3)
    ACC = RG(4)
    for q in range(4):
        for i in range(4):
            a(f"v_mov_b32_dpp v{12+4*q+i}, v{4+2*i} quad_perm:[{q},{q},{q},{q}] row_mask:0xf bank_mask:0xf")
    def gemv32(areg):
        for ks in range(4):
            for c in range(8):
                cc = "0" if ks == 0 else f"v[{ACC+4*c}:{ACC+4*c+3}]"
                a(f"v_mfma_f32_16x16x32_bf16 v[{ACC+4*c}:{ACC+4*c+3}], v[{areg+4*ks}:{areg+4*ks+3}], v[{RG(ks)+4*c}:{RG(ks)+4*c+3}], {cc}")
    gemv32(12)
    a("s_lshl_b32 s10, s7, 9")
    a("v_lshl_add_u32 v2, v31, 5, s10")
    for c in range(0, 8, 2):
        a(f"ds_write2_b32 v2, v{ACC+4*c}, v{ACC+4*c+4} offset0:{c} offset1:{c+1}")
    a("s_waitcnt lgkmcnt(0)")
    ts(4)
    a("s_barrier")
    a("s_cmp_lg_u32 s7, 0")
    a("s_cbranch_scc1 L_noarr")
    a("v_mov_b32 v4, 0"); a("v_mov_b32 v5, 1")
    a("s_mov_b64 exec, 1")
    a("global_atomic_add v4, v5, s[40:41] sc1")
    a("s_mov_b64 exec, -1")
    a("s_waitcnt vmcnt(0)")
    a("L_noarr:")
    srd(SA, P_WO, 4096 * 1024)
    a("v_lshlrev_b32 v1, 13, v30")
    a("v_lshl_add_u32 v1, v31, 4, v1")
    a("s_lshl_b32 s57, s4, 17")
    a("s_lshl_b32 s10, s7, 8")
    a("s_add_u32 s57, s57, s10")
    def wo_issue(i):
        ks, e = i >> 3, i & 7
        r = RG(ks + 1) + 4 * e
        a(f"buffer_load_dwordx4 v[{r}:{r+3}], v1, {sa}, s57 offen{WP}")
        a(f"s_add_u32 s57, s57, {1024 if e < 7 else 1024*25}")
    DWO = 4
    done = 0
    for i in range(32):
        if i >= DWO: a(f"s_waitcnt vmcnt({DWO-1})")
        wo_issue(i)
        while (done + 1) * 8 <= i + 1 - DWO:
            perms(done); done += 1
    a("s_waitcnt vmcnt(0)")
    while done < 4:
        perms(done); done += 1
    a("s_mov_b32 s12, 0")
    a("s_lshl_b32 s14, s7, 14")
    a(f"s_add_u32 s14, s14, {L_STG}")
    a("s_cmp_lt_u32 s2, 43")
    a("s_cbranch_scc0 L_not2w")
    a("s_mov_b32 s12, 1")
    srd(SA, P_WG, 512 * 2752); srd(SB, P_WU, 512 * 2752)
    a("v_mul_u32_u24 v2, 2752, v0")
    a("s_lshl_b32 s10, s2, 6")
    a("s_lshl_b32 s11, s7, 4")
    a("s_add_u32 s10, s10, s11")
    for i in range(8):
        for m, s in enumerate((sa, sb_)):
            a(f"s_add_u32 m0, s14, {m*8192 + i*1024}")
            a(f"buffer_load_dwordx4 v2, {s}, s10 offen lds")
        a(f"s_add_u32 s10, s10, {64*2752}")
        if i % 2 == 1: a("s_waitcnt vmcnt(0)")
    a("v_bfe_u32 v2, v31, 1, 1")
    a("v_lshlrev_b32 v2, 13, v2")
    a("v_lshl_add_u32 v2, v30, 7, v2")
    a("v_lshrrev_b32 v3, 2, v31")
    a("v_lshl_add_u32 v2, v3, 2, v2")
    a("v_and_b32 v3, 1, v31")
    a("v_lshl_add_u32 v2, v3, 1, v2")
    a("v_add_u32 v2, s14, v2")
    def gather16(nks, rowb):
        for ks in range(nks):
            for e in range(8):
                a(f"ds_read_u16 v{4+e}, v2 offset:{(ks*32+e)*rowb}")
            a("s_waitcnt lgkmcnt(0)")
            for t in range(4):
                a(f"v_lshl_or_b32 v{32+ks*4+t}, v{5+2*t}, 16, v{4+2*t}")
    gather16(16, 16)
    a("s_branch L_not3w")
    a("L_not2w:")
    a("s_and_b32 s10, s2, 0xe0")
    a("s_cmp_lg_u32 s10, 64")
    a("s_cbranch_scc1 L_not3w")
    a("s_mov_b32 s12, 2")
    srd(SA, P_WD, 1376 * 1024)
    a("v_lshrrev_b32 v2, 1, v0")
    a("v_lshlrev_b32 v2, 10, v2")
    a("v_and_b32 v3, 1, v0")
    a("v_lshl_add_u32 v2, v3, 4, v2")
    a("s_and_b32 s10, s2, 31")
    a("s_lshl_b32 s10, s10, 5")
    a(f"s_mul_i32 s11, s7, {11*32*1024}")
    a("s_add_u32 s10, s10, s11")
    for i in range(11):
        a(f"s_add_u32 m0, s14, {i*1024}")
        a(f"buffer_load_dwordx4 v2, {sa}, s10 offen lds")
        a(f"s_add_u32 s10, s10, {32*1024}")
        if i % 4 == 3: a("s_waitcnt vmcnt(0)")
    a("s_waitcnt vmcnt(0)")
    a("v_lshlrev_b32 v2, 8, v30")
    a("v_lshl_add_u32 v2, v31, 1, v2")
    a("v_add_u32 v2, s14, v2")
    gather16(11, 32)
    a("L_not3w:")
    ts(5)
    a("s_cmp_lg_u32 s7, 0")
    a("s_cbranch_scc1 L_noml")
    a("v_mov_b32 v4, 0")
    a(f"s_mov_b32 s15, {SPIN}")
    a("L_arr:")
    a("global_load_dword v5, v4, s[40:41] sc1")
    a("s_waitcnt vmcnt(0)")
    a(f"v_cmp_le_u32 vcc, {ARRIVE}, v5")
    a("s_cbranch_vccnz L_arrok")
    a("s_sleep 16")
    a("s_sub_u32 s15, s15, 1")
    a("s_cmp_lg_u32 s15, 0")
    a("s_cbranch_scc1 L_arr")
    a("L_arrok:")
    a(f"s_mov_b32 s15, {SPIN}")
    a("L_mlw:")
    a(f"ds_read_b32 v5, v4 offset:{L_CNT+4}")
    a("s_waitcnt lgkmcnt(0)")
    a("v_cmp_eq_u32 vcc, 4, v5")
    a("s_cbranch_vccnz L_mlok")
    a("s_sleep 4")
    a("s_sub_u32 s15, s15, 1")
    a("s_cmp_lg_u32 s15, 0")
    a("s_cbranch_scc1 L_mlw")
    a("L_mlok:")
    a("v_and_b32 v5, 3, v0")
    a("v_lshlrev_b32 v6, 3, v5")
    a(f"ds_read_b64 v[8:9], v6 offset:{L_ML}")
    a(f"s_mov_b32 s59, {LOG2E:#x}")
    a("s_waitcnt lgkmcnt(0)")
    a("v_max_f32_dpp v10, v8, v8 quad_perm:[1,0,3,2] row_mask:0xf bank_mask:0xf")
    a("v_max_f32_dpp v10, v10, v10 quad_perm:[2,3,0,1] row_mask:0xf bank_mask:0xf")
    a("v_sub_f32 v11, v8, v10")
    a("v_mul_f32 v11, s59, v11")
    a("v_exp_f32 v11, v11")
    a("v_mul_f32 v11, v11, v9")
    a("v_add_f32_dpp v11, v11, v11 quad_perm:[1,0,3,2] row_mask:0xf bank_mask:0xf")
    a("v_add_f32_dpp v11, v11, v11 quad_perm:[2,3,0,1] row_mask:0xf bank_mask:0xf")
    a("s_lshl_b32 s10, s2, 7")
    a(f"s_add_u32 s10, s10, {WS_ML}")
    a("s_mov_b64 exec, 1")
    a(f"buffer_store_dwordx2 v[10:11], v4, {sw}, s10 offen sc1")
    a("s_mov_b64 exec, -1")
    a("s_xor_b32 s10, s10, 1024")
    a(f"s_mov_b32 s15, {SPIN}")
    a("L_mlp:")
    a(f"buffer_load_dwordx2 v[12:13], v4, {sw}, s10 offen sc1")
    a("s_waitcnt vmcnt(0)")
    a("v_max_u32 v14, v12, v13")
    a("v_cmp_ne_u32 vcc, -1, v14")
    a("s_cbranch_vccnz L_mlpok")
    a("s_sleep 4")
    a("s_sub_u32 s15, s15, 1")
    a("s_cmp_lg_u32 s15, 0")
    a("s_cbranch_scc1 L_mlp")
    a("L_mlpok:")
    a("v_max_f32 v14, v10, v12")
    a("v_sub_f32 v10, v10, v14"); a("v_sub_f32 v12, v12, v14"); a("v_sub_f32 v8, v8, v14")
    a("v_mul_f32 v10, s59, v10"); a("v_mul_f32 v12, s59, v12"); a("v_mul_f32 v8, s59, v8")
    a("v_exp_f32 v10, v10"); a("v_exp_f32 v12, v12"); a("v_exp_f32 v8, v8")
    a("v_mul_f32 v10, v10, v11")
    a("v_fmac_f32 v10, v12, v13")
    a("v_rcp_f32 v10, v10")
    a("v_mul_f32 v8, v8, v10")
    a("v_lshlrev_b32 v6, 2, v5")
    a(f"ds_write_b32 v6, v8 offset:{L_F}")
    a("s_waitcnt lgkmcnt(0)")
    a("L_noml:")
    ts(6)
    a("v_and_b32 v2, 7, v31")
    a(f"v_mul_u32_u24 v2, {OR_STRIDE}, v2")
    a("v_lshl_add_u32 v2, v30, 4, v2")
    a("v_lshlrev_b32 v3, 5, v31")
    a("v_lshl_add_u32 v3, v30, 4, v3")
    a("s_lshl_b32 s10, s5, 17")
    a("s_lshl_b32 s11, s4, 12")
    a("s_add_u32 s10, s10, s11")
    a("s_lshl_b32 s11, s6, 11")
    a("s_add_u32 s10, s10, s11")
    a("s_lshl_b32 s11, s7, 9")
    a("s_add_u32 s10, s10, s11")
    a(f"s_add_u32 s10, s10, {WS_Y}")
    a("s_barrier")
    ts(7)
    for ks in range(4):
        a(f"ds_read_b128 v[{12+4*ks}:{15+4*ks}], v2 offset:{L_OR + ks*64}")
    for ks in range(4):
        a(f"s_waitcnt lgkmcnt({3-ks if not debug else 0})")
        for c in range(8):
            cc = "0" if ks == 0 else f"v[{ACC+4*c}:{ACC+4*c+3}]"
            a(f"v_mfma_f32_16x16x32_bf16 v[{ACC+4*c}:{ACC+4*c+3}], v[{12+4*ks}:{15+4*ks}], v[{RG(ks)+4*c}:{RG(ks)+4*c+3}], {cc}")
    for c in range(8):
        a(f"v_add_f32 v{ACC+4*c}, v{ACC+4*c}, v{ACC+4*c+1}")
        a(f"v_add_f32 v{ACC+4*c+2}, v{ACC+4*c+2}, v{ACC+4*c+3}")
        a(f"v_add_f32 v{4+c}, v{ACC+4*c}, v{ACC+4*c+2}")
    for c in range(4): a(f"v_permlane16_swap_b32 v{4+c}, v{8+c}")
    for c in range(4): a(f"v_add_f32 v{4+c}, v{4+c}, v{8+c}")
    a("s_mov_b32 exec_hi, 0")
    a(f"buffer_store_dwordx4 v[4:7], v3, {sw}, s10 offen sc1")
    a("s_mov_b64 exec, -1")
    ts(8)
    a("s_cmp_eq_u32 s12, 0")
    a("s_cbranch_scc1 L_done2")
    a("s_cmp_eq_u32 s12, 2")
    a("s_cbranch_scc1 L_t3")
    a("v_lshlrev_b32 v2, 5, v0")
    a("s_lshl_b32 s10, s7, 13")
    a(f"s_add_u32 s10, s10, {WS_MOD + 2048}")
    a(f"buffer_load_dwordx4 v[224:227], v2, {sw}, s10 offen sc1")
    a(f"buffer_load_dwordx4 v[228:231], v2, {sw}, s10 offen offset:16 sc1")
    a(f"buffer_load_dwordx4 v[232:235], v2, {sw}, s10 offen offset:2048 sc1")
    a(f"buffer_load_dwordx4 v[236:239], v2, {sw}, s10 offen offset:2064 sc1")
    a("s_lshl_b32 s10, s7, 11")
    a(f"s_add_u32 s10, s10, {WS_X1}")
    a(f"s_mul_i32 s11, s7, {H2_STRIDE}")
    a("v_lshl_add_u32 v3, v0, 4, s11")
    a("v_and_b32 v1, 3, v31")
    a(f"v_mul_u32_u24 v1, {H2_STRIDE}, v1")
    a("v_lshl_add_u32 v1, v30, 4, v1")
    a(f"s_mov_b32 s15, {SPIN}")
    a("s_barrier")
    a("L_t2poll:")
    a(f"buffer_load_dwordx4 v[4:7], v2, {sw}, s10 offen sc1")
    a(f"buffer_load_dwordx4 v[8:11], v2, {sw}, s10 offen offset:16 sc1")
    a("s_waitcnt vmcnt(0)")
    a("v_max3_u32 v12, v4, v5, v6"); a("v_max3_u32 v13, v7, v8, v9"); a("v_max3_u32 v12, v12, v10, v11"); a("v_max_u32 v12, v12, v13")
    a("v_cmp_eq_u32 vcc, -1, v12")
    a("s_cbranch_vccz L_t2ok")
    a("s_mov_b64 exec, vcc")
    a("s_sub_u32 s15, s15, 1")
    a("s_cmp_lg_u32 s15, 0")
    a("s_cbranch_scc1 L_t2poll")
    a("L_t2ok:")
    a("s_mov_b64 exec, -1")
    ts(9)
    ln_stats(4, 12, 20, 21, 22)
    a("v_rcp_f32 v21, v21")
    def rnd8(r):
        for i in range(4): a(f"v_cvt_pk_bf16_f32 v{12+i}, v{r+2*i}, v{r+2*i+1}")
        for i in range(4):
            a(f"v_lshlrev_b32 v{r+2*i}, 16, v{12+i}"); a(f"v_and_b32 v{r+2*i+1}, 0xffff0000, v{12+i}")
    for i in range(8): a(f"v_sub_f32 v{4+i}, v{4+i}, v20")
    rnd8(4)
    for i in range(8): a(f"v_mul_f32 v{4+i}, v{4+i}, v21")
    rnd8(4)
    for i in range(8): a(f"v_mul_f32 v{4+i}, v{4+i}, v{232+i}")
    rnd8(4)
    for i in range(8): a(f"v_add_f32 v{4+i}, v{4+i}, v{224+i}")
    for i in range(4): a(f"v_cvt_pk_bf16_f32 v{12+i}, v{4+2*i}, v{5+2*i}")
    a(f"ds_write_b128 v3, v[12:15] offset:{L_H2}")
    a("s_waitcnt lgkmcnt(0)")
    a("s_barrier")
    for ks in range(16):
        a(f"ds_read_b128 v[{96+4*ks}:{99+4*ks}], v1 offset:{L_H2 + ks*64}")
        if ks == 14: a("s_waitcnt lgkmcnt(14)")
    for ks in range(16):
        a(f"s_waitcnt lgkmcnt({min(15-ks, 14) if not debug else 0})")
        d = 4 + 4 * (ks & 1)
        cc = "0" if ks < 2 else f"v[{d}:{d+3}]"
        a(f"v_mfma_f32_16x16x32_bf16 v[{d}:{d+3}], v[{32+4*ks}:{35+4*ks}], v[{96+4*ks}:{99+4*ks}], {cc}")
    for i in range(4): a(f"v_add_f32 v{4+i}, v{4+i}, v{8+i}")
    a("v_cvt_pk_bf16_f32 v12, v4, v5"); a("v_cvt_pk_bf16_f32 v13, v6, v7")
    a("v_lshlrev_b32 v4, 16, v12"); a("v_and_b32 v5, 0xffff0000, v12"); a("v_lshlrev_b32 v6, 16, v13"); a("v_and_b32 v7, 0xffff0000, v13")
    K1 = -2.0 * math.sqrt(2.0 / math.pi) * 1.4426950408889634
    a(f"s_mov_b32 s10, {f2u(K1 * 0.044715):#x}")
    a(f"v_mov_b32 v14, {f2u(K1):#x}")
    for i in range(2): a(f"v_mul_f32 v{8+i}, v{4+i}, v{4+i}")
    for i in range(2): a(f"v_fma_f32 v{8+i}, v{8+i}, s10, v14")
    for i in range(2): a(f"v_mul_f32 v{8+i}, v{8+i}, v{4+i}")
    for i in range(2): a(f"v_exp_f32 v{8+i}, v{8+i}")
    for i in range(2): a(f"v_add_f32 v{8+i}, 1.0, v{8+i}")
    for i in range(2): a(f"v_rcp_f32 v{8+i}, v{8+i}")
    for i in range(2): a(f"v_mul_f32 v{8+i}, v{8+i}, v{4+i}")
    a("v_cvt_pk_bf16_f32 v12, v8, v9")
    a("v_lshlrev_b32 v8, 16, v12"); a("v_and_b32 v9, 0xffff0000, v12")
    a("v_mul_f32 v8, v8, v6"); a("v_mul_f32 v9, v9, v7")
    a("v_cvt_pk_bf16_f32 v12, v8, v9")
    a("v_lshlrev_b32 v2, 4, v31")
    a("v_lshl_add_u32 v2, v30, 2, v2")
    a("s_lshl_b32 s10, s2, 8")
    a("s_lshl_b32 s11, s7, 6")
    a("s_add_u32 s10, s10, s11")
    a(f"s_add_u32 s10, s10, {WS_HH}")
    a("s_mov_b32 exec_lo, 0x000f000f"); a("s_mov_b32 exec_hi, 0x000f000f")
    a(f"buffer_store_dword v12, v2, {sw}, s10 offen sc1")
    ts(10)
    a("L_done2:")
    fin()
    a("L_t3:")
    srd(SA, P_OUT, 4096)
    a("s_and_b32 s13, s2, 31")
    a("v_and_b32 v1, 3, v31")
    a("v_lshrrev_b32 v2, 2, v31")
    a("v_lshlrev_b32 v3, 8, v2")
    a("v_lshl_add_u32 v3, v30, 6, v3")
    a("v_lshl_add_u32 v3, v1, 4, v3")
    a(f"s_mul_i32 s10, s7, {11*256}")
    a(f"s_add_u32 s10, s10, {WS_HH}")
    a("v_lshlrev_b32 v20, 13, v1")
    a("v_lshl_add_u32 v20, v30, 4, v20")
    a("s_lshl_b32 s11, s13, 6")
    a(f"s_add_u32 s14, s11, {WS_MOD + 6144}")
    a(f"buffer_load_dwordx4 v[224:227], v20, {sw}, s14 offen sc1")
    a("v_lshlrev_b32 v20, 11, v1")
    a("v_lshl_add_u32 v20, v30, 4, v20")
    a(f"s_add_u32 s14, s11, {WS_X1}")
    a("s_cmp_eq_u32 s7, 3")
    a("s_cselect_b32 s11, 2, 3")
    a("v_cmp_gt_u32 vcc, s11, v2")
    a("s_mov_b64 s[64:65], vcc")
    a("s_lshl_b32 s11, s7, 10")
    a("v_lshl_add_u32 v21, v0, 4, s11")
    a("v_lshlrev_b32 v22, 4, v0")
    a(f"s_mov_b32 s15, {SPIN}")
    a("s_barrier")
    a("L_t3poll:")
    for i in range(3):
        a(f"buffer_load_dwordx4 v[{4+4*i}:{7+4*i}], v3, {sw}, s10 offen offset:{i*1024} sc1")
    a(f"buffer_load_dwordx4 v[228:231], v20, {sw}, s14 offen sc1")
    a("s_waitcnt vmcnt(0)")
    a("v_max3_u32 v16, v12, v13, v14"); a("v_max_u32 v16, v16, v15")
    a("v_cndmask_b32 v16, 0, v16, s[64:65]")
    a("v_max3_u32 v17, v4, v5, v6"); a("v_max3_u32 v18, v7, v8, v9"); a("v_max3_u32 v16, v16, v10, v11")
    a("v_max3_u32 v19, v228, v229, v230"); a("v_max3_u32 v16, v16, v17, v18"); a("v_max3_u32 v16, v16, v19, v231")
    a("v_cmp_eq_u32 vcc, -1, v16")
    a("s_cbranch_vccz L_t3ok")
    a("s_mov_b64 exec, vcc")
    a("s_sub_u32 s15, s15, 1")
    a("s_cmp_lg_u32 s15, 0")
    a("s_cbranch_scc1 L_t3poll")
    a("L_t3ok:")
    a("s_mov_b64 exec, -1")
    ts(9)
    for ks in range(10):
        q = ks & 3
        d = 96 + 4 * q
        cc = "0" if ks < 4 else f"v[{d}:{d+3}]"
        a(f"v_mfma_f32_16x16x32_bf16 v[{d}:{d+3}], v[{32+4*ks}:{35+4*ks}], v[{4+4*(ks>>2)}:{7+4*(ks>>2)}], {cc}")
    a("s_cmp_eq_u32 s7, 3")
    a("s_cbranch_scc1 L_t3skip")
    a("v_mfma_f32_16x16x32_bf16 v[104:107], v[72:75], v[12:15], v[104:107]")
    a("L_t3skip:")
    a("s_nop 7")
    for q in (3, 0, 1, 2):
        a(f"s_mov_b32 exec_lo, {0x000F000F << (4*q):#x}"); a(f"s_mov_b32 exec_hi, {0x000F000F << (4*q):#x}")
        a(f"ds_write_b128 v21, v[{96+4*q}:{99+4*q}] offset:{L_T3}")
    a("s_mov_b64 exec, -1")
    a("s_waitcnt lgkmcnt(0)")
    a("s_barrier")
    a("s_cmp_lg_u32 s7, 0")
    a("s_cbranch_scc1 L_done3")
    for w in range(4):
        a(f"ds_read_b128 v[{4+4*w}:{7+4*w}], v22 offset:{L_T3 + w*1024}")
    a("s_waitcnt lgkmcnt(0)")
    for i in range(4):
        a(f"v_add_f32 v{4+i}, v{4+i}, v{8+i}"); a(f"v_add_f32 v{12+i}, v{12+i}, v{16+i}")
    for i in range(4): a(f"v_add_f32 v{4+i}, v{4+i}, v{12+i}")
    for r in (4, 8):
        for i in range(4): a(f"v_add_f32_dpp v{4+i}, v{4+i}, v{4+i} row_ror:{r} row_mask:0xf bank_mask:0xf")
    def rnd4():
        a("v_cvt_pk_bf16_f32 v12, v4, v5"); a("v_cvt_pk_bf16_f32 v13, v6, v7")
        a("v_lshlrev_b32 v4, 16, v12"); a("v_and_b32 v5, 0xffff0000, v12"); a("v_lshlrev_b32 v6, 16, v13"); a("v_and_b32 v7, 0xffff0000, v13")
    rnd4()
    for i in range(4): a(f"v_mul_f32 v{4+i}, v{4+i}, v{224+i}")
    rnd4()
    for i in range(4): a(f"v_add_f32 v{4+i}, v{4+i}, v{228+i}")
    a("v_cvt_pk_bf16_f32 v12, v4, v5"); a("v_cvt_pk_bf16_f32 v13, v6, v7")
    a("v_lshlrev_b32 v2, 10, v1")
    a("v_lshl_add_u32 v2, v30, 3, v2")
    a("s_lshl_b32 s10, s13, 5")
    a("s_mov_b32 exec_lo, 0x000f000f"); a("s_mov_b32 exec_hi, 0x000f000f")
    a(f"buffer_store_dwordx2 v[12:13], v2, {sa}, s10 offen")
    a("s_cmp_lg_u32 s13, 0")
    a("s_cbranch_scc1 L_done3")
    a("s_mov_b64 exec, 1")
    a("v_mov_b32 v2, 0"); a("v_mov_b32 v3, s56")
    a(f"buffer_store_dword v3, v2, {sw}, 0 offen sc1")
    a("L_done3:")
    ts(10)
    fin()
    if debug:
        a("L_fin:")
        a("s_mov_b64 exec, 1")
        srd(SW, P_WS, WS_END)
        a("s_lshl_b32 s10, s2, 3")
        a("s_add_u32 s10, s10, s3")
        a("s_lshl_b32 s10, s10, 6")
        a(f"s_add_u32 s10, s10, {WS_TS}")
        a("v_mov_b32 v2, 0")
        for k in range(12):
            a(f"v_mov_b32 v3, s{72+2*k}")
            a(f"buffer_store_dword v3, v2, {sw}, s10 offen offset:{4*k}")
        a("s_getreg_b32 s11, hwreg(HW_REG_XCC_ID)")
        a("v_mov_b32 v3, s11")
        a(f"buffer_store_dword v3, v2, {sw}, s10 offen offset:60")
    a("L_exit:")
    a("s_endpgm")
    body = a.finish()
    txt = HEADER + f"; @launch grid=(256,1,1) block=(512,1,1) lds={L_END}\n"
    txt += f""".amdgcn_target "amdgcn-amd-amdhsa--gfx950"
.text
.globl {KN}
.p2align 8
.type {KN},@function
{KN}:
{body}.section .rodata,"a"
.p2align 6
.amdhsa_kernel {KN}
  .amdhsa_next_free_vgpr 256
  .amdhsa_next_free_sgpr 102
  .amdhsa_accum_offset 256
  .amdhsa_group_segment_fixed_size 0
  .amdhsa_kernarg_size 112
  .amdhsa_user_sgpr_count 2
  .amdhsa_user_sgpr_kernarg_segment_ptr 1
  .amdhsa_system_sgpr_workgroup_id_x 1
  .amdhsa_float_denorm_mode_32 3
.end_amdhsa_kernel
"""
    return txt

if __name__ == "__main__":
    out = sys.argv[1] if len(sys.argv) > 1 else "adaLN_cond__gqa_block_cached__glu_gated_geglu__decode.s"
    kw = {}
    for arg in sys.argv[2:]:
        k, v = arg.split("=")
        kw[k] = v if k == "wpol" else int(v)
    open(out, "w").write(gen(**kw))
    print("wrote", out)
```

```python
import sys, math, struct
from asmlib import Asm

KN = "adaLN_cond__gqa_block_cached__glu_gated_geglu__decode_kernel"
HEADER = open("adaLN_cond__gqa_block_cached__glu_gated_geglu__decode.s.ref").read().split("; Override launch")[0]

WS_EPOCH, WS_MG, WS_ML, WS_X1, WS_Y, WS_Y2, WS_TS, WS_END = 0, 0x1000, 0x10000, 0x20000, 0x40000, 0xC0000, 0x180000, 0x200000
MG_B = 12288
L_QP, L_P, L_ML, L_CNT, L_F, L_OR, L_MODP, L_H1, L_H2, L_HH, L_STG, L_END = 0, 2048, 10496, 10560, 10576, 10752, 13056, 17152, 18176, 22528, 32768, 163840
OR_STRIDE, H2_STRIDE = 272, 1040
LOG2E = 0x3fb8aa3b
SCALE = 0x3db504f3
SPIN = 1 << 17
ARRIVE = 256 + 32
T2_LO, T1_LO, MOD_LO = 192, 128, 128

def f2u(x):
    return struct.unpack("<I", struct.pack("<f", x))[0]

def gen(D=8, DW=8, DWO=4, NL=0, debug=False, wpol="nt", qpol="nt", hmap=1, warm=1, nowo=0, nowq=0, noffn=0, prio=0):
    a = Asm()
    def ts(k):
        if debug:
            a(f"s_memrealtime s[{72+2*k}:{73+2*k}]")
            a("s_waitcnt lgkmcnt(0)")
    def srd(base, ptr, size):
        a(f"s_mov_b32 s{base}, s{ptr}"); a(f"s_mov_b32 s{base+1}, s{ptr+1}")
        a(f"s_mov_b32 s{base+2}, {size}"); a(f"s_mov_b32 s{base+3}, 0x20000")
    def mask64(s, lo):
        a(f"s_mov_b32 s{s}, {lo:#x}"); a(f"s_mov_b32 s{s+1}, {lo:#x}")
    def execm(lo):
        a(f"s_mov_b32 exec_lo, {lo:#x}"); a(f"s_mov_b32 exec_hi, {lo:#x}")
    def bf16r(v):
        a(f"v_cvt_pk_bf16_f32 v{v}, v{v}, v{v}")
        a(f"v_and_b32 v{v}, 0xffff0000, v{v}")
    def rndn(r, n, t):
        for i in range(n // 2): a(f"v_cvt_pk_bf16_f32 v{t+i}, v{r+2*i}, v{r+2*i+1}")
        for i in range(n // 2):
            a(f"v_lshlrev_b32 v{r+2*i}, 16, v{t+i}"); a(f"v_and_b32 v{r+2*i+1}, 0xffff0000, v{t+i}")
    def allreduce(op, v, t):
        for r in (1, 2, 4, 8):
            a(f"{op}_dpp v{v}, v{v}, v{v} row_ror:{r} row_mask:0xf bank_mask:0xf")
        for sw_ in ("v_permlane16_swap_b32", "v_permlane32_swap_b32"):
            a(f"v_mov_b32 v{t}, v{v}")
            a(f"{sw_} v{t}, v{v}")
            a(f"{op} v{v}, v{v}, v{t}")
    def spin_tail(cnt, label):
        a(f"s_sub_u32 s{cnt}, s{cnt}, 1")
        a(f"s_cmp_lg_u32 s{cnt}, 0")
        a(f"s_cbranch_scc1 {label}")
    def lds_wait(off, val, tag, sleep=4):
        a("v_mov_b32 v4, 0")
        a(f"s_mov_b32 s15, {SPIN}")
        a(f"L_{tag}:")
        a(f"ds_read_b32 v5, v4 offset:{off}")
        a("s_waitcnt lgkmcnt(0)")
        a(f"v_cmp_eq_u32 vcc, {val}, v5")
        a(f"s_cbranch_vccnz L_{tag}ok")
        a(f"s_sleep {sleep}")
        spin_tail(15, f"L_{tag}")
        a(f"L_{tag}ok:")
    def make_tag():
        a("s_add_u32 s10, s56, 1")
        a("s_and_b32 s10, s10, 0xff")
        a("s_mul_i32 s56, s56, 1664525")
        a("s_add_u32 s56, s56, 1013904223")
        a("s_andn2_b32 s56, s56, 0xff")
        a("s_or_b32 s56, s56, s10")
    def fin():
        a("s_branch L_fin" if debug else "s_endpgm")
    def ln_stats(x0, t0, vm, vs, tmp):
        a(f"v_add_f32 v{t0}, v{x0}, v{x0+1}"); a(f"v_add_f32 v{t0+1}, v{x0+2}, v{x0+3}")
        a(f"v_add_f32 v{t0+2}, v{x0+4}, v{x0+5}"); a(f"v_add_f32 v{t0+3}, v{x0+6}, v{x0+7}")
        a(f"v_add_f32 v{t0}, v{t0}, v{t0+1}"); a(f"v_add_f32 v{t0+2}, v{t0+2}, v{t0+3}")
        a(f"v_add_f32 v{vm}, v{t0}, v{t0+2}")
        allreduce("v_add_f32", vm, tmp)
        a(f"v_mul_f32 v{vm}, {f2u(1/512):#x}, v{vm}")
        for i in range(8): a(f"v_sub_f32 v{t0+i}, v{x0+i}, v{vm}")
        a(f"v_mul_f32 v{vs}, v{t0}, v{t0}"); a(f"v_mul_f32 v{tmp}, v{t0+1}, v{t0+1}")
        for i in (2, 4, 6):
            a(f"v_fmac_f32 v{vs}, v{t0+i}, v{t0+i}"); a(f"v_fmac_f32 v{tmp}, v{t0+i+1}, v{t0+i+1}")
        a(f"v_add_f32 v{vs}, v{vs}, v{tmp}")
        allreduce("v_add_f32", vs, tmp)
        bf16r(vm)
        a(f"v_mul_f32 v{vs}, {f2u(1/512):#x}, v{vs}")
        bf16r(vs)
        a(f"v_add_f32 v{vs}, {f2u(1e-5):#x}, v{vs}")
        bf16r(vs)
        a(f"v_sqrt_f32 v{vs}, v{vs}")
        bf16r(vs)
    WP = (" " + wpol) if wpol else ""
    QPOL = (" " + qpol) if qpol else ""
    P_X, P_K, P_V, P_WQ, P_WO, P_WG, P_WU, P_WD, P_C, P_WM, P_OUT, P_DBG, P_WS = 16, 18, 20, 22, 24, 28, 30, 32, 34, 36, 38, 40, 42
    SA, SB, SW = 44, 48, 52
    sa, sb_, sw = "s[44:47]", "s[48:51]", "s[52:55]"

    a("L_entry:")
    a("s_cmp_ge_u32 s2, 256")
    a("s_cbranch_scc1 L_exit")
    a("s_load_dwordx16 s[16:31], s[0:1], 0")
    a("s_load_dwordx8 s[32:39], s[0:1], 64")
    a("s_load_dwordx4 s[40:43], s[0:1], 96")
    if debug:
        for k in range(12): a(f"s_mov_b32 s{72+2*k}, 0")
    a("v_lshrrev_b32 v1, 6, v0")
    a("v_and_b32 v0, 63, v0")
    a("v_readfirstlane_b32 s3, v1")
    a("s_and_b32 s8, s2, 7")
    a("s_lshr_b32 s9, s2, 3")
    a("s_lshr_b32 s4, s9, 3")
    if hmap == 0:
        a("s_lshl_b32 s4, s4, 3")
        a("s_add_u32 s4, s4, s8")
    else:
        a("s_lshl_b32 s10, s8, 2")
        a("s_add_u32 s4, s4, s10")
    a("s_bfe_u32 s5, s9, 0x20001")
    a("s_and_b32 s6, s9, 1")
    a("v_lshrrev_b32 v30, 4, v0")
    a("v_and_b32 v31, 15, v0")
    a("s_cmp_ge_u32 s3, 4")
    a("s_cbranch_scc1 L_service")

    a("v_lshrrev_b32 v3, 2, v31")
    a("v_and_b32 v4, 3, v31")
    a("v_lshlrev_b32 v1, 8, v3")
    a("v_lshl_add_u32 v1, v4, 4, v1")
    a("v_lshl_add_u32 v1, v30, 6, v1")
    a("v_lshlrev_b32 v2, 4, v0")
    a("s_lshl_b32 s57, s5, 5")
    a("s_add_u32 s57, s57, s4")
    a("s_lshl_b32 s57, s57, 20")
    a("s_lshl_b32 s10, s6, 19")
    a("s_add_u32 s57, s57, s10")
    a("s_lshl_b32 s10, s3, 12")
    a("s_add_u32 s57, s57, s10")
    a("s_mov_b32 s58, s57")
    a("s_waitcnt lgkmcnt(0)")
    ts(0)
    srd(SA, P_K, 128 << 20); srd(SB, P_V, 128 << 20)
    NSLOT = 48
    PRE = NSLOT - 4
    def in_lds(q): return PRE <= q < PRE + NL
    regq = [q for q in range(128) if not in_lds(q)]
    rslot = {q: i % NSLOT for i, q in enumerate(regq)}
    vbase = (rslot[regq[-1]] + 1) % NSLOT
    def slot(q):
        return 64 + 4 * (rslot[q] if q < 128 else (vbase + (q - 128) % D) % NSLOT)
    def issue(q, wait=True):
        if wait: a(f"s_waitcnt vmcnt({D-1})")
        r = q & 3
        off = f" offset:{r*1024}" if r else ""
        if in_lds(q):
            if r == 0:
                a(f"s_add_u32 m0, s14, {(q-PRE)*1024}")
            a(f"buffer_load_dwordx4 v1, {sa}, s57 offen{off} nt lds")
            if r == 3: a("s_add_u32 s57, s57, 16384")
            return
        s = slot(q)
        if q < 128:
            a(f"buffer_load_dwordx4 v[{s}:{s+3}], v1, {sa}, s57 offen{off} nt")
            if r == 3: a("s_add_u32 s57, s57, 16384")
        else:
            a(f"buffer_load_dwordx4 v[{s}:{s+3}], v2, {sb_}, s58 offen{off} nt")
            if r == 3: a("s_add_u32 s58, s58, 16384")
    for q in range(D): issue(q, wait=False)
    a("s_load_dword s56, s[42:43], 0")
    for j in range(4): mask64(60 + 2 * j, (0x000F000F << (4 * j)))
    mask64(68, 0xAAAAAAAA); mask64(70, 0xCCCCCCCC)
    a("s_lshl_b32 s14, s3, 15")
    a(f"s_add_u32 s14, s14, {L_STG}")
    a("v_add_u32 v59, s14, v2")
    a("v_lshlrev_b32 v29, 5, v4")
    a("v_lshl_add_u32 v29, v30, 7, v29")
    a("s_lshl_b32 s10, s3, 11")
    a(f"s_add_u32 s10, s10, {L_P}")
    a("v_lshlrev_b32 v28, 6, v4")
    a("v_lshl_add_u32 v28, v30, 4, v28")
    a("v_lshl_add_u32 v28, v3, 2, v28")
    a("v_add_u32 v56, s10, v28")
    a("v_lshl_add_u32 v3, v30, 4, s10")
    a("v_and_b32 v8, 1, v31")
    a("v_cmp_eq_u32 vcc, 1, v8")
    a("v_mov_b32 v9, 0xffff")
    a("v_mov_b32 v10, 0xffff0000")
    a("v_cndmask_b32 v9, v9, v10, vcc")
    a("v_bfe_u32 v8, v31, 1, 2")
    for w in range(4):
        a(f"v_cmp_eq_u32 vcc, {w}, v8")
        a(f"v_cndmask_b32 v{4+w}, 0, v9, vcc")
    a("v_mov_b32 v57, 0xff800000")
    a("s_waitcnt lgkmcnt(0)")
    make_tag()
    a("s_barrier")
    for q in range(D, PRE + NL): issue(q)
    ts(1)
    a("s_barrier")
    ts(2)
    for w in range(4):
        d = 32 + 8 * w if w < 3 else 8
        a(f"ds_read_b128 v[{d}:{d+3}], v29 offset:{L_QP + w*512}")
        a(f"ds_read_b128 v[{d+4}:{d+7}], v29 offset:{L_QP + w*512 + 16}")
    issue(PRE + NL)
    a("s_waitcnt lgkmcnt(0)")
    for i in range(8):
        a(f"v_add_f32 v{32+i}, v{32+i}, v{40+i}")
        a(f"v_add_f32 v{8+i}, v{8+i}, v{48+i}")
    for i in range(8):
        a(f"v_add_f32 v{8+i}, v{8+i}, v{32+i}")
    for i in range(4):
        a(f"v_cvt_pk_bf16_f32 v{24+i}, v{8+2*i}, v{9+2*i}")
    for j in range(4):
        for i in range(4):
            a(f"v_cndmask_b32 v{32+4*j+i}, 0, v{24+i}, s[{60+2*j}:{61+2*j}]")
    a(f"s_mov_b32 s59, {SCALE:#x}")
    LT = 64 + 4 * 24
    def consume(q):
        t, j = q >> 2, q & 3
        acc = 8 + 4 * (t & 3)
        if in_lds(q):
            if j == 0:
                for jj in range(4):
                    a(f"ds_read_b128 v[{LT+4*jj}:{LT+4*jj+3}], v59 offset:{(q-PRE+jj)*1024}")
            a(f"s_waitcnt lgkmcnt({3-j})")
            s = LT + 4 * j
        else:
            s = slot(q)
        c = "0" if j == 0 else f"v[{acc}:{acc+3}]"
        a(f"v_mfma_f32_16x16x32_bf16 v[{acc}:{acc+3}], v[{s}:{s+3}], v[{32+4*j}:{35+4*j}], {c}")
        if (q & 15) == 15:
            u = q >> 4
            for i in range(4):
                a(f"v_mov_b32_dpp v{24+i}, v{8+4*i} quad_perm:[0,0,0,0] row_mask:0xf bank_mask:0xf")
            for r in (1, 2, 3):
                for i in range(4):
                    a(f"v_add_f32_dpp v{24+i}, v{8+4*i+r}, v{24+i} quad_perm:[{r},{r},{r},{r}] row_mask:0xf bank_mask:0xf")
            a("v_cndmask_b32 v24, v24, v25, s[68:69]")
            a("v_cndmask_b32 v26, v26, v27, s[68:69]")
            a("v_cndmask_b32 v24, v24, v26, s[70:71]")
            bf16r(24)
            a("v_mul_f32 v24, s59, v24")
            a("v_cvt_pk_bf16_f32 v24, v24, v24")
            a(f"v_and_b32 v{48+u}, 0xffff0000, v24")
            a(f"v_max_f32 v57, v57, v{48+u}")
    issued, consumed = PRE + NL + 1, 0
    live = {slot(q): q for q in range(issued) if not in_lds(q)}
    while consumed < 128:
        landed = issued - D
        n = 0
        while consumed < min(landed, 128) and n < 12:
            if in_lds(consumed):
                if (consumed | 3) >= landed: break
                for jj in range(4): assert live.get(LT + 4 * jj, -1) < consumed, "LDS staging slot busy"
            consume(consumed); consumed += 1; n += 1
        if issued < 128 + D:
            assert live.get(slot(issued), -1) < consumed, "ring slot busy"
            if consumed < PRE + NL: assert not (LT <= slot(issued) < LT + 16)
            live[slot(issued)] = issued
            issue(issued); issued += 1
    ts(3)
    allreduce("v_max_f32", 57, 24)
    a(f"s_mov_b32 s59, {LOG2E:#x}")
    a("v_mul_f32 v25, s59, v57")
    for u in range(8):
        a(f"v_fma_f32 v{48+u}, v{48+u}, s59, -v25")
    for u in range(8):
        a(f"v_exp_f32 v{48+u}, v{48+u}")
    for u in range(8):
        a(f"v_cvt_pk_bf16_f32 v{8+u}, v{48+u}, v{48+u}")
        a(f"ds_write_b32 v56, v{8+u} offset:{u*256}")
    a("ds_read_b128 v[12:15], v3")
    a("ds_read_b128 v[16:19], v3 offset:64")
    a("v_add_f32 v48, v48, v49"); a("v_add_f32 v50, v50, v51"); a("v_add_f32 v52, v52, v53"); a("v_add_f32 v54, v54, v55")
    a("v_add_f32 v48, v48, v50"); a("v_add_f32 v52, v52, v54"); a("v_add_f32 v58, v48, v52")
    allreduce("v_add_f32", 58, 24)
    a("v_mov_b32 v26, v57"); a("v_mov_b32 v27, v58")
    a("s_lshl_b32 s10, s3, 3")
    a("v_mov_b32 v24, s10")
    a("v_mov_b32 v25, 1")
    a(f"ds_write_b64 v24, v[26:27] offset:{L_ML}")
    a("v_mov_b32 v24, 0")
    a("s_mov_b64 exec, 1")
    a(f"ds_add_u32 v24, v25 offset:{L_CNT+4}")
    a("s_mov_b64 exec, -1")
    a("s_waitcnt lgkmcnt(0)")
    for j in range(4):
        for w in range(4):
            a(f"v_and_b32 v{32+4*j+w}, v{12+j}, v{4+w}")
    for i in range(4): a(f"v_mov_b32 v{8+i}, 0")
    a("v_add_u32 v3, 128, v3")
    ts(4)
    def vstep(v, rel, load, waitn, build):
        t, j = v >> 2, v & 3
        ab, ob = 32 + 16 * (t & 1), 32 + 16 * ((t + 1) & 1)
        ppn, ppf = 12 + 4 * ((t + 1) & 1), 12 + 4 * (t & 1)
        s = slot(128 + v)
        if j == 0 and build:
            a("s_waitcnt lgkmcnt(0)")
            a(f"ds_read_b128 v[{ppf}:{ppf+3}], v3 offset:{rel*64}")
        a(f"s_waitcnt vmcnt({waitn})")
        a(f"v_mfma_f32_16x16x32_bf16 v[8:11], v[{ab+4*j}:{ab+4*j+3}], v[{s}:{s+3}], v[8:11]")
        if load: issue(128 + v + D, wait=False)
        if build:
            for w in range(4):
                a(f"v_and_b32 v{ob+4*j+w}, v{ppn+j}, v{4+w}")
    UL = D * 8 // math.gcd(D, 8)
    nit = (128 - D) // UL
    a(f"s_mov_b32 s11, {nit}")
    a("L_vloop:")
    for v in range(UL): vstep(v, v >> 2, True, D - 1, True)
    a(f"v_add_u32 v3, {UL//4*64}, v3")
    spin_tail(11, "L_vloop")
    base = nit * UL
    a("s_lshl_b32 s10, s3, 2")
    a("v_mov_b32 v24, s10")
    a(f"s_mov_b32 s11, {SPIN}")
    a("L_fwait:")
    a(f"ds_read_b32 v25, v24 offset:{L_F}")
    a("s_waitcnt lgkmcnt(0)")
    a("v_cmp_ne_u32 vcc, -1, v25")
    a("s_cbranch_vccnz L_fok")
    a("s_sleep 2")
    spin_tail(11, "L_fwait")
    a("L_fok:")
    a("v_and_b32 v26, 1, v30")
    a("v_lshlrev_b32 v26, 3, v26")
    a("v_lshl_add_u32 v26, v31, 4, v26")
    a(f"s_mul_i32 s10, s3, {OR_STRIDE}")
    a("v_add_u32 v26, s10, v26")
    for v in range(base, 128):
        ld = v + D < 128
        vstep(v, (v - base) >> 2, ld, D - 1 if ld else 127 - v, v < 124)
    ts(5)
    for i in range(4): a(f"v_mul_f32 v{8+i}, v{8+i}, v25")
    a("v_cvt_pk_bf16_f32 v12, v8, v9")
    a("v_cvt_pk_bf16_f32 v13, v10, v11")
    a(f"ds_write_b64 v26, v[12:13] offset:{L_OR}")
    a("v_lshlrev_b32 v14, 16, v12"); a("v_and_b32 v15, 0xffff0000, v12")
    a("v_lshlrev_b32 v16, 16, v13"); a("v_and_b32 v17, 0xffff0000, v13")
    for i in range(4): a(f"v_sub_f32 v{8+i}, v{8+i}, v{14+i}")
    a("v_cvt_pk_bf16_f32 v18, v8, v9")
    a("v_cvt_pk_bf16_f32 v19, v10, v11")
    a(f"ds_write_b64 v26, v[18:19] offset:{L_OR + 4*OR_STRIDE}")
    a("s_waitcnt lgkmcnt(0)")
    a("s_barrier")
    a("s_cmp_lg_u32 s3, 0")
    a("s_cbranch_scc1 L_done")
    a(f"s_cmp_lt_u32 s2, {T1_LO}")
    a("s_cbranch_scc1 L_done")
    srd(SW, P_WS, WS_END)
    srd(SA, P_X, 4096)
    srd(SB, P_OUT, 4096)
    a("s_bfe_u32 s12, s2, 0x20005")
    a("s_and_b32 s13, s2, 31")
    a("v_lshrrev_b32 v29, 2, v0")
    a("v_lshlrev_b32 v1, 11, v29")
    a("v_and_b32 v2, 3, v0")
    a("v_lshl_add_u32 v1, v2, 4, v1")
    a("s_lshl_b32 s10, s12, 17")
    a("s_lshl_b32 s11, s13, 6")
    a("s_add_u32 s10, s10, s11")
    a(f"s_add_u32 s60, s10, {WS_Y}")
    for u in (1, 2, 3): a(f"s_add_u32 s{60+u}, s60, {u*32768}")
    a("v_lshrrev_b32 v3, 1, v30")
    a("v_and_b32 v4, 1, v30")
    a("v_lshl_add_u32 v5, v2, 1, v4")
    a("v_lshl_add_u32 v4, v5, 1, v3")
    a("v_lshlrev_b32 v5, 3, v5")
    a("v_lshlrev_b32 v41, 4, v3")
    a("v_lshlrev_b32 v3, 1, v4")
    a("v_lshlrev_b32 v4, 2, v4")
    a(f"s_mul_i32 s10, s12, {MG_B}")
    a("s_add_u32 s10, s10, s11")
    a(f"s_add_u32 s10, s10, {WS_MG + 2*2048}")
    a(f"s_add_u32 s66, s10, {3*2048}")
    a("s_lshl_b32 s14, s12, 10")
    a("s_lshl_b32 s67, s13, 5")
    a("s_add_u32 s14, s14, s67")
    a(f"buffer_load_ushort v7, v3, {sa}, s14 offen")
    a(f"buffer_load_dwordx2 v[42:43], v5, {sw}, s10 offen sc1")
    a(f"buffer_load_dwordx2 v[44:45], v5, {sw}, s66 offen sc1")
    a("v_mov_b32 v40, 0xff")
    def gather_poll(tag, nload, offs):
        a(f"s_mov_b32 s15, {SPIN}")
        a(f"L_{tag}poll:")
        for u in range(nload):
            a(f"buffer_load_dwordx4 v[{8+4*u}:{11+4*u}], v{offs[u]}, {sw}, s{60+u} offen sc1")
        a("s_waitcnt vmcnt(0)")
        for i in range(2 * nload):
            a(f"v_bitop3_b32 v{32+i}, v{8+2*i}, v{9+2*i}, s56 bitop3:0x7e")
        if nload == 4:
            a("v_or3_b32 v32, v32, v33, v34"); a("v_or3_b32 v35, v35, v36, v37"); a("v_or3_b32 v32, v32, v38, v39")
        else:
            a("v_or_b32 v36, v36, v37"); a("v_or3_b32 v32, v32, v33, v34")
            a("v_cndmask_b32 v36, 0, v36, s[64:65]")
            a("v_or_b32 v35, v35, v36")
        a("v_bitop3_b32 v32, v32, v35, v40 bitop3:0xa8")
        a("v_cmp_ne_u32 vcc, 0, v32")
        a(f"s_cbranch_vccz L_{tag}ok")
        a("s_mov_b64 exec, vcc")
        spin_tail(15, f"L_{tag}poll")
        a(f"L_{tag}ok:")
        a("s_mov_b64 exec, -1")
    def gather_sum(nload):
        for i in range(4):
            a(f"v_add_f32 v{8+i}, v{8+i}, v{12+i}")
            if nload == 4: a(f"v_add_f32 v{16+i}, v{16+i}, v{20+i}")
        for i in range(4): a(f"v_add_f32 v{8+i}, v{8+i}, v{16+i}")
        a("v_permlane32_swap_b32 v8, v9")
        a("v_permlane32_swap_b32 v10, v11")
        a("v_add_f32 v8, v8, v9")
        a("v_add_f32 v10, v10, v11")
        a("v_permlane16_swap_b32 v8, v10")
        a("v_add_f32 v8, v8, v10")
        a("v_add_f32_dpp v8, v8, v8 row_ror:4 row_mask:0xf bank_mask:0xf")
        a("v_add_f32_dpp v8, v8, v8 row_ror:8 row_mask:0xf bank_mask:0xf")
    gather_poll("t1", 4, [1, 1, 1, 1])
    a(f"s_mov_b32 s15, {SPIN}")
    a("L_gchk:")
    a("v_bitop3_b32 v32, v43, v45, s56 bitop3:0x7e")
    a("v_cmp_ne_u32 vcc, 0, v32")
    a("s_cbranch_vccz L_gok")
    a(f"buffer_load_dwordx2 v[42:43], v5, {sw}, s10 offen sc1")
    a(f"buffer_load_dwordx2 v[44:45], v5, {sw}, s66 offen sc1")
    a("s_waitcnt vmcnt(0)")
    spin_tail(15, "L_gchk")
    a("L_gok:")
    ts(6)
    a(f"s_sub_u32 s10, s2, {T2_LO}")
    a("s_cmp_ge_u32 s10, 43")
    a("s_cbranch_scc1 L_t1nobar")
    a("s_barrier")
    a("L_t1nobar:")
    a("v_lshrrev_b32 v6, v41, v42")
    a("v_lshlrev_b32 v6, 16, v6")
    a("v_lshlrev_b32 v7, 16, v7")
    gather_sum(4)
    bf16r(8)
    a("v_mul_f32 v8, v8, v6")
    bf16r(8)
    a("v_add_f32 v7, v8, v7")
    bf16r(7)
    a("s_lshl_b32 s10, s12, 11")
    a("s_add_u32 s10, s10, s11")
    a(f"s_add_u32 s60, s10, {WS_X1}")
    a("v_and_or_b32 v9, s56, v40, v7")
    execm(0x000f000f)
    a(f"buffer_store_dword v9, v4, {sw}, s60 offen sc1")
    a("s_mov_b64 exec, -1")
    ts(7)
    a("v_lshlrev_b32 v1, 13, v29")
    a("v_lshl_add_u32 v1, v2, 4, v1")
    a("v_cmp_gt_u32 vcc, 11, v29")
    a("v_mov_b32 v5, 0x7ffffff0")
    a("v_cndmask_b32 v5, v5, v1, vcc")
    a("s_mov_b64 s[64:65], vcc")
    a(f"s_add_u32 s60, s10, {WS_Y2}")
    a(f"s_add_u32 s61, s60, {16*8192}")
    a(f"s_add_u32 s62, s60, {32*8192}")
    a("v_lshrrev_b32 v28, v41, v44")
    a("v_lshlrev_b32 v28, 16, v28")
    a(f"s_sub_u32 s10, s2, {T2_LO}")
    a("s_cmp_ge_u32 s10, 43")
    a("s_cbranch_scc1 L_t3nobar")
    a("s_barrier")
    a("s_barrier")
    a("L_t3nobar:")
    gather_poll("t3", 3, [1, 1, 5])
    ts(8)
    gather_sum(3)
    bf16r(8)
    a("v_mul_f32 v8, v8, v28")
    bf16r(8)
    a("v_add_f32 v8, v8, v7")
    a("v_cvt_pk_bf16_f32 v8, v8, v8")
    execm(0x000f000f)
    a(f"buffer_store_short v8, v3, {sb_}, s14 offen")
    ts(9)
    a("L_done:")
    fin()

    RG = lambda i: 96 + 32 * i
    ACC = RG(4)
    def mod_loads():
        srd(SA, P_C, 4096)
        a("v_and_b32 v2, 3, v31")
        a("v_lshlrev_b32 v2, 10, v2")
        a("v_lshrrev_b32 v3, 2, v31")
        a("v_lshl_add_u32 v2, v3, 6, v2")
        a("v_lshl_add_u32 v2, v30, 4, v2")
        a("s_lshl_b32 s10, s7, 8")
        a(f"buffer_load_dwordx4 v[16:19], v2, {sa}, s10 offen")
        srd(SA, P_WM, 512 * 6144)
        a("v_mul_u32_u24 v2, 49152, v30")
        a("v_lshl_add_u32 v2, v31, 3, v2")
        a(f"s_mul_i32 s10, s7, {128*6144}")
        a("s_lshl_b32 s11, s13, 7")
        a("s_add_u32 s10, s10, s11")
        for ks in range(4):
            for e in range(8):
                r = 32 + ks * 16 + 2 * e
                a(f"buffer_load_dwordx2 v[{r}:{r+1}], v2, {sa}, s10 offen{WP}")
                a(f"s_add_u32 s10, s10, {6144 if e < 7 else 6144*25}")
    def mod_silu(T):
        a("s_waitcnt vmcnt(32)")
        hi, lo = -1.4426950216293335, -1.925963033500011e-08
        a(f"s_mov_b32 s59, {f2u(hi):#x}")
        a(f"s_mov_b32 s58, {f2u(lo):#x}")
        X, E, L_, R = T, T + 8, T + 16, T + 24
        for i in range(4):
            a(f"v_lshlrev_b32 v{X+2*i}, 16, v{16+i}"); a(f"v_and_b32 v{X+2*i+1}, 0xffff0000, v{16+i}")
        for i in range(8): a(f"v_mul_f32 v{E+i}, s59, v{X+i}")
        for i in range(8): a(f"v_fma_f32 v{L_+i}, v{X+i}, s59, -v{E+i}")
        for i in range(8): a(f"v_fmac_f32 v{L_+i}, s58, v{X+i}")
        for i in range(8): a(f"v_exp_f32 v{E+i}, v{E+i}")
        for i in range(8): a(f"v_mul_f32 v{L_+i}, {f2u(math.log(2.0)):#x}, v{L_+i}")
        for i in range(8): a(f"v_min_f32 v{E+i}, {f2u(1e37):#x}, v{E+i}")
        for i in range(8): a(f"v_fmac_f32 v{E+i}, v{E+i}, v{L_+i}")
        for i in range(8): a(f"v_add_f32 v{E+i}, 1.0, v{E+i}")
        for i in range(8): a(f"v_rcp_f32 v{R+i}, v{E+i}")
        for i in range(8): a(f"v_mul_f32 v{L_+i}, v{X+i}, v{R+i}")
        for i in range(8): a(f"v_fma_f32 v{E+i}, -v{L_+i}, v{E+i}, v{X+i}")
        for i in range(8): a(f"v_fmac_f32 v{L_+i}, v{E+i}, v{R+i}")
        for i in range(4): a(f"v_cvt_pk_bf16_f32 v{4+i}, v{L_+2*i}, v{L_+2*i+1}")
        for q in (1, 2, 3):
            for i in range(4):
                a(f"v_mov_b32_dpp v{4+4*q+i}, v{4+i} row_shl:{4*q} row_mask:0xf bank_mask:0xf")
    def mod_rest(T, extra, tag, arrive):
        for ks in range(4):
            a(f"s_waitcnt vmcnt({extra + 8*(3-ks)})")
            for c in range(4):
                for t in range(4):
                    r = 32 + ks * 16
                    a(f"v_perm_b32 v{T+c*4+t}, v{r+2*(2*t+1)+(c>>1)}, v{r+2*(2*t)+(c>>1)}, s{62+(c&1)}")
            for c in range(4):
                d = T + 16 + 4 * c
                cc = "0" if ks == 0 else f"v[{d}:{d+3}]"
                a(f"v_mfma_f32_16x16x32_bf16 v[{d}:{d+3}], v[{4+4*ks}:{7+4*ks}], v[{T+c*4}:{T+c*4+3}], {cc}")
        a("s_lshl_b32 s10, s7, 10")
        a("v_lshl_add_u32 v25, v31, 6, s10")
        a("s_mov_b64 exec, 0xffff")
        for c in range(4):
            a(f"ds_write_b128 v25, v[{T+16+4*c}:{T+19+4*c}] offset:{L_MODP+16*c}")
        a("s_mov_b64 exec, 1")
        a("v_mov_b32 v26, 0"); a("v_mov_b32 v27, 1")
        a(f"ds_add_rtn_u32 v26, v26, v27 offset:{L_CNT}")
        a("s_mov_b64 exec, -1")
        a("v_lshlrev_b32 v25, 6, v31")
        a("v_lshl_add_u32 v25, v30, 2, v25")
        a(f"v_add_u32 v25, {L_MODP}, v25")
        a("v_add_u32 v24, 2048, v25")
        a("s_waitcnt lgkmcnt(0)")
        a("v_readfirstlane_b32 s10, v26")
        a("s_cmp_lg_u32 s10, 3")
        a(f"s_cbranch_scc1 L_{tag}end")
        for c in range(4):
            a(f"ds_read2st64_b32 v[{4+2*c}:{5+2*c}], v25 offset0:0 offset1:4")
            a(f"ds_read2st64_b32 v[{12+2*c}:{13+2*c}], v24 offset0:0 offset1:4")
            if c < 3:
                a("v_add_u32 v25, 16, v25"); a("v_add_u32 v24, 16, v24")
        a(f"v_mul_u32_u24 v2, {MG_B}, v30")
        a("v_lshl_add_u32 v2, v31, 4, v2")
        a("s_lshl_b32 s10, s13, 8")
        a(f"s_add_u32 s10, s10, {WS_MG}")
        a("s_lshr_b32 s11, s13, 3")
        a("s_waitcnt lgkmcnt(0)")
        for c in range(4):
            a(f"v_add_f32 v{4+2*c}, v{4+2*c}, v{5+2*c}"); a(f"v_add_f32 v{12+2*c}, v{12+2*c}, v{13+2*c}")
        for c in range(4): a(f"v_add_f32 v{20+c}, v{4+2*c}, v{12+2*c}")
        a("s_cmp_eq_u32 s11, 1")
        a(f"s_cbranch_scc1 L_{tag}one")
        a("s_cmp_lg_u32 s11, 4")
        a(f"s_cbranch_scc1 L_{tag}st")
        a(f"L_{tag}one:")
        rndn(20, 4, 4)
        for c in range(4): a(f"v_add_f32 v{20+c}, 1.0, v{20+c}")
        a(f"L_{tag}st:")
        a("v_cvt_pk_bf16_f32 v4, v20, v21"); a("v_mov_b32 v5, s56")
        a("v_cvt_pk_bf16_f32 v6, v22, v23"); a("v_mov_b32 v7, s56")
        a(f"buffer_store_dwordx4 v[4:7], v2, {sw}, s10 offen sc1")
        if not arrive: ts(1)
        a(f"L_{tag}end:")
    def warm_code(v, n0, n1):
        a("s_getpc_b64 s[10:11]")
        lab = a.label("L_pc")
        a(f"{lab}:")
        a(f"s_sub_u32 s10, s10, {lab}-L_entry")
        a("s_subb_u32 s11, s11, 0")
        a(f"v_lshlrev_b32 v{v}, 7, v0")
        if n0: a(f"v_add_u32 v{v}, {n0*8192}, v{v}")
        for i in range(n0, n1):
            a(f"v_cmp_gt_u32 vcc, L_exit-L_entry, v{v}")
            a("s_and_saveexec_b64 s[64:65], vcc")
            skip = a.label("L_wsk")
            a(f"s_cbranch_execz {skip}")
            a(f"global_load_dword v{v+1}, v{v}, s[10:11]")
            a(f"{skip}:")
            a("s_mov_b64 exec, s[64:65]")
            a(f"v_add_u32 v{v}, 8192, v{v}")

    a("L_service:")
    if prio: a(f"s_setprio {prio}")
    a("s_sub_u32 s7, s3, 4")
    a("s_mov_b32 s62, 0x05040100"); a("s_mov_b32 s63, 0x07060302")
    a("s_mov_b32 s12, 0")
    a("s_cmp_ge_u32 s2, 64")
    a("s_cbranch_scc1 L_norole")
    a("s_cmp_lt_u32 s8, 2")
    a("s_cselect_b32 s12, 1, 0")
    a("L_norole:")
    a("v_lshlrev_b32 v1, 16, v30")
    a("v_lshl_add_u32 v1, v31, 4, v1")
    a("v_mov_b32 v4, 0"); a("v_mov_b32 v5, 0"); a("v_mov_b32 v6, 0"); a("v_mov_b32 v7, 0")
    a("v_mov_b32 v8, -1"); a("v_mov_b32 v9, -1"); a("v_mov_b32 v10, -1"); a("v_mov_b32 v11, -1")
    a(f"ds_write_b128 v4, v[4:7] offset:{L_CNT}")
    a(f"ds_write_b128 v4, v[8:11] offset:{L_F}")
    a("s_waitcnt lgkmcnt(0)")
    ts(0)
    a("s_load_dword s56, s[42:43], 0")
    srd(SW, P_WS, WS_END)
    a("s_cmp_eq_u32 s12, 0")
    a("s_cbranch_scc1 L_noprod1")
    a("s_lshl_b32 s13, s8, 3")
    a("s_add_u32 s13, s13, s9")
    mod_loads()
    mod_silu(RG(1))
    a("s_waitcnt vmcnt(8)")
    a("L_noprod1:")
    srd(SA, P_WQ, 512 * 8192)
    a("s_lshl_b32 s57, s7, 20")
    a("s_lshl_b32 s10, s4, 8")
    a("s_add_u32 s57, s57, s10")
    def wq_issue(i):
        ks, e = i >> 3, i & 7
        r = RG(ks + 1) + 4 * e
        if not nowq: a(f"buffer_load_dwordx4 v[{r}:{r+3}], v1, {sa}, s57 offen{QPOL}")
        a(f"s_add_u32 s57, s57, {8192 if e < 7 else 8192*25}")
    for i in range(DW): wq_issue(i)
    a("s_waitcnt lgkmcnt(0)")
    a("s_barrier")
    make_tag()
    a("s_cmp_eq_u32 s12, 0")
    a("s_cbranch_scc1 L_m1end")
    mod_rest(RG(0), 0 if nowq else DW, "m1", False)
    srd(SB, P_X, 4096)
    a("v_lshlrev_b32 v2, 4, v0")
    a("s_lshl_b32 s10, s5, 10")
    a(f"buffer_load_dwordx4 v[32:35], v2, {sb_}, s10 offen")
    a("v_lshlrev_b32 v2, 2, v0")
    a("s_lshl_b32 s11, s7, 8")
    a("s_add_u32 s10, s10, s11")
    a(f"buffer_load_dword v36, v2, {sb_}, s10 offen")
    if warm:
        a("s_cmp_lg_u32 s7, 3")
        a("s_cbranch_scc1 L_nowarm1")
        warm_code(60, 0, 4)
        a("L_nowarm1:")
    def perms(ks):
        for c in range(8):
            for t in range(4):
                a(f"v_perm_b32 v{RG(ks)+c*4+t}, v{RG(ks+1)+4*(2*t+1)+(c>>1)}, v{RG(ks+1)+4*(2*t)+(c>>1)}, s{62+(c&1)}")
    done = 0
    for i in range(DW, 32):
        a(f"s_waitcnt vmcnt({DW-1})")
        wq_issue(i)
        while (done + 1) * 8 <= i + 1 - DW:
            perms(done); done += 1
    a("v_lshlrev_b32 v2, 3, v0")
    a(f"s_mul_i32 s10, s5, {MG_B}")
    a("s_lshl_b32 s11, s7, 9")
    a("s_add_u32 s10, s10, s11")
    a(f"s_add_u32 s10, s10, {WS_MG}")
    a(f"buffer_load_dwordx2 v[4:5], v2, {sw}, s10 offen sc1")
    a(f"buffer_load_dwordx2 v[6:7], v2, {sw}, s10 offen offset:2048 sc1")
    a(f"s_waitcnt vmcnt({2 if nowq else min(32-DW, DW)+2})")
    for i in range(4):
        a(f"v_lshlrev_b32 v{40+2*i}, 16, v{32+i}"); a(f"v_and_b32 v{41+2*i}, 0xffff0000, v{32+i}")
    ln_stats(40, 48, 56, 57, 58)
    a("v_rcp_f32 v57, v57")
    a("v_lshlrev_b32 v38, 16, v36"); a("v_and_b32 v39, 0xffff0000, v36")
    a("v_sub_f32 v38, v38, v56"); a("v_sub_f32 v39, v39, v56")
    rndn(38, 2, 58)
    a("v_mul_f32 v38, v38, v57"); a("v_mul_f32 v39, v39, v57")
    rndn(38, 2, 58)
    a("s_lshl_b32 s11, s7, 8")
    a(f"s_add_u32 s11, s11, {L_H1}")
    a("v_lshl_add_u32 v28, v0, 2, s11")
    a("v_lshl_add_u32 v29, v30, 4, s11")
    while done < 4:
        a(f"s_waitcnt vmcnt({2 + 8*(3-done)})")
        perms(done); done += 1
    a(f"s_mov_b32 s15, {SPIN}")
    ts(2)
    a("s_branch L_hchk")
    a("L_hpoll:")
    a(f"buffer_load_dwordx2 v[4:5], v2, {sw}, s10 offen sc1")
    a(f"buffer_load_dwordx2 v[6:7], v2, {sw}, s10 offen offset:2048 sc1")
    a("L_hchk:")
    a("s_waitcnt vmcnt(0)")
    a("v_xor_b32 v8, s56, v5"); a("v_xor_b32 v9, s56, v7")
    a("v_or_b32 v8, v8, v9")
    a("v_cmp_ne_u32 vcc, 0, v8")
    a("s_cbranch_vccz L_hok")
    spin_tail(15, "L_hpoll")
    a("L_hok:")
    ts(3)
    a("v_lshlrev_b32 v8, 16, v6"); a("v_and_b32 v9, 0xffff0000, v6")
    a("v_mul_f32 v8, v8, v38"); a("v_mul_f32 v9, v9, v39")
    a("v_lshlrev_b32 v10, 16, v4"); a("v_and_b32 v11, 0xffff0000, v4")
    rndn(8, 2, 12)
    a("v_add_f32 v8, v8, v10"); a("v_add_f32 v9, v9, v11")
    a("v_cvt_pk_bf16_f32 v8, v8, v9")
    a("ds_write_b32 v28, v8")
    for ks in range(4):
        a(f"ds_read_b128 v[{12+4*ks}:{15+4*ks}], v29 offset:{ks*64}")
    def gemv32():
        for ks in range(4):
            a(f"s_waitcnt lgkmcnt({3-ks})")
            for c in range(8):
                cc = "0" if ks == 0 else f"v[{ACC+4*c}:{ACC+4*c+3}]"
                a(f"v_mfma_f32_16x16x32_bf16 v[{ACC+4*c}:{ACC+4*c+3}], v[{12+4*ks}:{15+4*ks}], v[{RG(ks)+4*c}:{RG(ks)+4*c+3}], {cc}")
    a("s_lshl_b32 s10, s7, 9")
    a("v_lshl_add_u32 v2, v31, 5, s10")
    gemv32()
    for c in range(0, 8, 2):
        a(f"ds_write2_b32 v2, v{ACC+4*c}, v{ACC+4*c+4} offset0:{c} offset1:{c+1}")
    a("s_waitcnt lgkmcnt(0)")
    ts(4)
    a("s_barrier")
    a(f"s_sub_u32 s12, s2, {T2_LO}")
    a("s_cmp_lt_u32 s12, 43")
    a("s_cselect_b32 s12, 1, 0")
    a(f"s_sub_u32 s13, s2, {MOD_LO}")
    a("s_cmp_ge_u32 s13, 32")
    a("s_cbranch_scc1 L_m2end")
    a("s_add_u32 s13, s13, 16")
    mod_loads()
    mod_silu(RG(1))
    mod_rest(RG(0), 0, "m2", True)
    srd(SA, P_WO, 4096 * 1024)
    a("v_lshlrev_b32 v1, 13, v30")
    a("v_lshl_add_u32 v1, v31, 4, v1")
    a("s_lshl_b32 s57, s4, 17")
    a("s_lshl_b32 s10, s7, 8")
    a("s_add_u32 s57, s57, s10")
    def wo_issue(i):
        ks, e = i >> 3, i & 7
        r = RG(ks + 1) + 4 * e
        if not nowo: a(f"buffer_load_dwordx4 v[{r}:{r+3}], v1, {sa}, s57 offen{QPOL}")
        a(f"s_add_u32 s57, s57, {1024 if e < 7 else 1024*25}")
    done = 0
    for i in range(32):
        if i >= DWO: a(f"s_waitcnt vmcnt({DWO-1})")
        wo_issue(i)
        while (done + 1) * 8 <= i + 1 - DWO:
            perms(done); done += 1
    a("s_waitcnt vmcnt(0)")
    while done < 4:
        perms(done); done += 1
    ts(5)
    a("s_cmp_lg_u32 s7, 0")
    a("s_cbranch_scc1 L_noml")
    lds_wait(L_CNT + 4, 4, "mlw")
    a("v_and_b32 v5, 3, v0")
    a("v_lshlrev_b32 v6, 3, v5")
    a(f"ds_read_b64 v[8:9], v6 offset:{L_ML}")
    a(f"s_mov_b32 s59, {LOG2E:#x}")
    a("s_waitcnt lgkmcnt(0)")
    a("v_max_f32_dpp v10, v8, v8 quad_perm:[1,0,3,2] row_mask:0xf bank_mask:0xf")
    a("v_max_f32_dpp v10, v10, v10 quad_perm:[2,3,0,1] row_mask:0xf bank_mask:0xf")
    a("v_sub_f32 v11, v8, v10")
    a("v_mul_f32 v11, s59, v11")
    a("v_exp_f32 v11, v11")
    a("v_mul_f32 v11, v11, v9")
    a("v_add_f32_dpp v11, v11, v11 quad_perm:[1,0,3,2] row_mask:0xf bank_mask:0xf")
    a("v_add_f32_dpp v11, v11, v11 quad_perm:[2,3,0,1] row_mask:0xf bank_mask:0xf")
    a("s_lshl_b32 s10, s2, 7")
    a(f"s_add_u32 s10, s10, {WS_ML}")
    a("v_mov_b32 v16, v10"); a("v_mov_b32 v17, s56"); a("v_mov_b32 v18, v11"); a("v_mov_b32 v19, s56")
    a("s_mov_b64 exec, 1")
    a(f"buffer_store_dwordx4 v[16:19], v4, {sw}, s10 offen sc1")
    a("s_mov_b64 exec, -1")
    a("s_xor_b32 s10, s10, 1024")
    a(f"s_mov_b32 s15, {SPIN}")
    a("L_mlp:")
    a("s_sleep 40")
    a(f"buffer_load_dwordx4 v[20:23], v4, {sw}, s10 offen sc1")
    a("s_waitcnt vmcnt(0)")
    a("v_bitop3_b32 v14, v21, v23, s56 bitop3:0x7e")
    a("v_cmp_eq_u32 vcc, 0, v14")
    a("s_cbranch_vccnz L_mlpok")
    spin_tail(15, "L_mlp")
    a("L_mlpok:")
    a("v_mov_b32 v12, v20"); a("v_mov_b32 v13, v22")
    a("v_max_f32 v14, v10, v12")
    a("v_sub_f32 v10, v10, v14"); a("v_sub_f32 v12, v12, v14"); a("v_sub_f32 v8, v8, v14")
    a("v_mul_f32 v10, s59, v10"); a("v_mul_f32 v12, s59, v12"); a("v_mul_f32 v8, s59, v8")
    a("v_exp_f32 v10, v10"); a("v_exp_f32 v12, v12"); a("v_exp_f32 v8, v8")
    a("v_mul_f32 v10, v10, v11")
    a("v_fmac_f32 v10, v12, v13")
    a("v_rcp_f32 v10, v10")
    a("v_mul_f32 v8, v8, v10")
    a("v_lshlrev_b32 v6, 2, v5")
    a(f"ds_write_b32 v6, v8 offset:{L_F}")
    a("s_waitcnt lgkmcnt(0)")
    a("L_noml:")
    G_OFF, D_OFF, F_OFF = L_STG, L_STG + 65536, L_STG + 98304
    a("s_cmp_eq_u32 s12, 0")
    a("s_cbranch_scc1 L_noffn")
    lds_wait(L_CNT + 4, 4, "kdone")
    a(f"s_sub_u32 s13, s2, {T2_LO}")
    srd(SA, P_WG, 512 * 2752); srd(SB, P_WU, 512 * 2752)
    a("v_lshrrev_b32 v2, 2, v0")
    a("v_mul_u32_u24 v2, 2752, v2")
    a("v_and_b32 v3, 3, v0")
    a("v_lshl_add_u32 v2, v3, 4, v2")
    a("s_lshl_b32 s10, s13, 6")
    a(f"s_mul_i32 s11, s7, {128*2752}")
    a("s_add_u32 s10, s10, s11")
    a("s_lshl_b32 s14, s7, 13")
    a(f"s_add_u32 s14, s14, {G_OFF}")
    for i in range(8):
        for m, s in enumerate((sa, sb_)):
            a(f"s_add_u32 m0, s14, {m*32768 + i*1024}")
            if not noffn: a(f"buffer_load_dwordx4 v2, {s}, s10 offen{WP} lds")
        a(f"s_add_u32 s10, s10, {16*2752}")
        a("s_waitcnt vmcnt(2)")
    srd(SA, P_WD, 1376 * 1024)
    a("v_lshlrev_b32 v2, 10, v30")
    a("v_lshl_add_u32 v2, v31, 4, v2")
    a("s_lshl_b32 s10, s13, 15")
    a("s_lshl_b32 s11, s7, 8")
    a("s_add_u32 s10, s10, s11")
    a(f"s_add_u32 s14, s14, {D_OFF - G_OFF}")
    for i in range(8):
        a(f"s_add_u32 m0, s14, {i*1024}")
        if not noffn: a(f"buffer_load_dwordx4 v2, {sa}, s10 offen{WP} lds")
        a("s_add_u32 s10, s10, 4096")
        a("s_waitcnt vmcnt(3)")
    a("s_waitcnt vmcnt(0)")
    a("v_mov_b32 v4, 0"); a("v_mov_b32 v5, 1")
    a("s_mov_b64 exec, 1")
    a(f"ds_add_u32 v4, v5 offset:{L_CNT+8}")
    a("s_mov_b64 exec, -1")
    a("v_lshlrev_b32 v2, 11, v30")
    a("v_lshl_add_u32 v2, v31, 1, v2")
    a("v_add_u32 v2, s14, v2")
    a(f"s_add_u32 s14, s14, {F_OFF - D_OFF}")
    a("v_lshl_add_u32 v29, v0, 4, s14")
    for i in range(8):
        for e in range(8):
            a(f"ds_read_u16 v{4+e}, v2 offset:{e*256 + i*32}")
        a("s_waitcnt lgkmcnt(0)")
        for t in range(4):
            a(f"v_lshl_or_b32 v{12+t}, v{5+2*t}, 16, v{4+2*t}")
        a(f"ds_write_b128 v29, v[12:15] offset:{i*1024}")
    lds_wait(L_CNT + 8, 4, "gu")
    a("v_bfe_u32 v2, v31, 1, 1")
    a("v_lshlrev_b32 v2, 15, v2")
    a("v_lshl_add_u32 v2, v30, 9, v2")
    a("v_lshrrev_b32 v3, 2, v31")
    a("v_lshl_add_u32 v2, v3, 2, v2")
    a("v_and_b32 v3, 1, v31")
    a("v_lshl_add_u32 v2, v3, 1, v2")
    a("s_lshl_b32 s10, s7, 4")
    a(f"s_add_u32 s10, s10, {G_OFF}")
    a("v_add_u32 v2, s10, v2")
    for ks in range(16):
        for e in range(8):
            a(f"ds_read_u16 v{4+e}, v2 offset:{(ks*32+e)*64}")
        a("s_waitcnt lgkmcnt(0)")
        for t in range(4):
            a(f"v_lshl_or_b32 v{32+ks*4+t}, v{5+2*t}, 16, v{4+2*t}")
    a("L_noffn:")
    ts(6)
    if warm:
        a("s_cmp_lg_u32 s7, 3")
        a("s_cbranch_scc1 L_nowarm2")
        warm_code(4, 0, 4)
        a("L_nowarm2:")
    a("v_and_b32 v2, 7, v31")
    a(f"v_mul_u32_u24 v2, {OR_STRIDE}, v2")
    a("v_lshl_add_u32 v2, v30, 4, v2")
    a("v_lshlrev_b32 v3, 5, v31")
    a("v_lshl_add_u32 v3, v30, 4, v3")
    a("s_lshl_b32 s10, s5, 17")
    a("s_lshl_b32 s11, s4, 12")
    a("s_add_u32 s10, s10, s11")
    a("s_lshl_b32 s11, s6, 11")
    a("s_add_u32 s10, s10, s11")
    a("s_lshl_b32 s11, s7, 9")
    a("s_add_u32 s10, s10, s11")
    a(f"s_add_u32 s10, s10, {WS_Y}")
    a("v_mov_b32 v28, 0xff")
    a("s_waitcnt vmcnt(0)")
    a("s_barrier")
    ts(7)
    for ks in range(4):
        a(f"ds_read_b128 v[{12+4*ks}:{15+4*ks}], v2 offset:{L_OR + ks*64}")
    gemv32()
    for c in range(8):
        a(f"v_add_f32 v{ACC+4*c}, v{ACC+4*c}, v{ACC+4*c+1}")
        a(f"v_add_f32 v{ACC+4*c+2}, v{ACC+4*c+2}, v{ACC+4*c+3}")
        a(f"v_add_f32 v{4+c}, v{ACC+4*c}, v{ACC+4*c+2}")
    for c in range(4): a(f"v_permlane16_swap_b32 v{4+c}, v{8+c}")
    for c in range(4): a(f"v_add_f32 v{4+c}, v{4+c}, v{8+c}")
    for c in range(4): a(f"v_bfi_b32 v{4+c}, v28, s56, v{4+c}")
    a("s_mov_b32 exec_hi, 0")
    a(f"buffer_store_dwordx4 v[4:7], v3, {sw}, s10 offen sc1")
    a("s_mov_b64 exec, -1")
    ts(8)
    a("s_cmp_eq_u32 s12, 0")
    a("s_cbranch_scc1 L_done2")
    DF, HB, MO = 160, 192, 208
    a("v_lshlrev_b32 v2, 5, v0")
    a(f"s_mul_i32 s10, s7, {MG_B}")
    a(f"s_add_u32 s10, s10, {WS_MG + 3*2048}")
    a(f"s_mov_b32 s15, {SPIN}")
    a("L_sbpoll:")
    a(f"buffer_load_dwordx4 v[224:227], v2, {sw}, s10 offen sc1")
    a(f"buffer_load_dwordx4 v[228:231], v2, {sw}, s10 offen offset:16 sc1")
    a(f"buffer_load_dwordx4 v[232:235], v2, {sw}, s10 offen offset:2048 sc1")
    a(f"buffer_load_dwordx4 v[236:239], v2, {sw}, s10 offen offset:2064 sc1")
    a("s_waitcnt vmcnt(0)")
    for i in range(4): a(f"v_bitop3_b32 v{12+i}, v{225+4*i}, v{227+4*i}, s56 bitop3:0x7e")
    a("v_or3_b32 v12, v12, v13, v14")
    a("v_or_b32 v12, v12, v15")
    a("v_cmp_ne_u32 vcc, 0, v12")
    a("s_cbranch_vccz L_sbok")
    spin_tail(15, "L_sbpoll")
    a("L_sbok:")
    for i in range(8):
        a(f"ds_read_b128 v[{DF+4*i}:{DF+4*i+3}], v29 offset:{i*1024}")
    for i in range(16): a(f"v_mov_b32 v{HB+i}, 0")
    a("s_lshl_b32 s10, s7, 11")
    a(f"s_add_u32 s10, s10, {WS_X1}")
    a(f"s_mul_i32 s11, s7, {H2_STRIDE}")
    a("v_lshl_add_u32 v3, v0, 4, s11")
    a("v_and_b32 v24, 3, v31")
    a(f"v_mul_u32_u24 v1, {H2_STRIDE}, v24")
    a("v_lshl_add_u32 v1, v30, 4, v1")
    a("s_lshl_b32 s11, s7, 6")
    a("v_lshl_add_u32 v25, v31, 4, s11")
    a("v_lshl_add_u32 v25, v30, 2, v25")
    a("v_lshlrev_b32 v26, 6, v30")
    a("v_lshl_add_u32 v26, v24, 4, v26")
    a("v_lshlrev_b32 v27, 11, v24")
    a("v_lshrrev_b32 v22, 2, v31")
    a("v_lshl_add_u32 v27, v22, 6, v27")
    a("v_lshl_add_u32 v27, v30, 4, v27")
    a("s_lshl_b32 s14, s13, 13")
    a("s_lshl_b32 s11, s7, 9")
    a("s_add_u32 s14, s14, s11")
    a(f"s_add_u32 s14, s14, {WS_Y2}")
    a("s_waitcnt vmcnt(0)")
    for i in range(8):
        a(f"v_lshlrev_b32 v{MO+2*i}, 16, v{224+2*i}"); a(f"v_and_b32 v{MO+2*i+1}, 0xffff0000, v{224+2*i}")
    K1 = -2.0 * math.sqrt(2.0 / math.pi) * 1.4426950408889634
    a(f"s_mov_b32 s59, {f2u(K1 * 0.044715):#x}")
    a(f"v_mov_b32 v23, {f2u(K1):#x}")
    a(f"s_mov_b32 s15, {SPIN}")
    a("s_waitcnt lgkmcnt(0)")
    a("s_barrier")
    a("L_t2poll:")
    a(f"buffer_load_dwordx4 v[4:7], v2, {sw}, s10 offen sc1")
    a(f"buffer_load_dwordx4 v[8:11], v2, {sw}, s10 offen offset:16 sc1")
    a("s_waitcnt vmcnt(0)")
    for i in range(4): a(f"v_bitop3_b32 v{12+i}, v{4+2*i}, v{5+2*i}, s56 bitop3:0x7e")
    a("v_or3_b32 v12, v12, v13, v14")
    a("v_bitop3_b32 v12, v12, v15, v28 bitop3:0xa8")
    a("v_cmp_ne_u32 vcc, 0, v12")
    a("s_cbranch_vccz L_t2ok")
    a("s_mov_b64 exec, vcc")
    spin_tail(15, "L_t2poll")
    a("L_t2ok:")
    a("s_mov_b64 exec, -1")
    ts(9)
    for i in range(8): a(f"v_and_b32 v{4+i}, 0xffff0000, v{4+i}")
    ln_stats(4, 12, 20, 21, 22)
    a("v_rcp_f32 v21, v21")
    for i in range(8): a(f"v_sub_f32 v{4+i}, v{4+i}, v20")
    rndn(4, 8, 12)
    for i in range(8): a(f"v_mul_f32 v{4+i}, v{4+i}, v21")
    rndn(4, 8, 12)
    for i in range(8): a(f"v_mul_f32 v{4+i}, v{4+i}, v{MO+8+i}")
    rndn(4, 8, 12)
    for i in range(8): a(f"v_add_f32 v{4+i}, v{4+i}, v{MO+i}")
    for i in range(4): a(f"v_cvt_pk_bf16_f32 v{12+i}, v{4+2*i}, v{5+2*i}")
    a(f"ds_write_b128 v3, v[12:15] offset:{L_H2}")
    a("s_waitcnt lgkmcnt(0)")
    a("s_barrier")
    for ks in range(15):
        a(f"ds_read_b128 v[{96+4*ks}:{99+4*ks}], v1 offset:{L_H2 + ks*64}")
    for ks in range(16):
        a(f"s_waitcnt lgkmcnt({14 if ks < 2 else 15-ks})")
        d = 4 + 4 * (ks & 1)
        cc = "0" if ks < 2 else f"v[{d}:{d+3}]"
        a(f"v_mfma_f32_16x16x32_bf16 v[{d}:{d+3}], v[{32+4*ks}:{35+4*ks}], v[{96+4*ks}:{99+4*ks}], {cc}")
        if ks == 0: a(f"ds_read_b128 v[156:159], v1 offset:{L_H2 + 15*64}")
    for i in range(4): a(f"v_add_f32 v{4+i}, v{4+i}, v{8+i}")
    rndn(4, 4, 12)
    for i in range(2): a(f"v_mul_f32 v{8+i}, v{4+i}, v{4+i}")
    for i in range(2): a(f"v_fma_f32 v{8+i}, v{8+i}, s59, v23")
    for i in range(2): a(f"v_mul_f32 v{8+i}, v{8+i}, v{4+i}")
    for i in range(2): a(f"v_exp_f32 v{8+i}, v{8+i}")
    for i in range(2): a(f"v_add_f32 v{8+i}, 1.0, v{8+i}")
    for i in range(2): a(f"v_rcp_f32 v{8+i}, v{8+i}")
    for i in range(2): a(f"v_mul_f32 v{8+i}, v{8+i}, v{4+i}")
    rndn(8, 2, 12)
    a("v_mul_f32 v8, v8, v6"); a("v_mul_f32 v9, v9, v7")
    a("v_cvt_pk_bf16_f32 v12, v8, v9")
    execm(0x000f000f)
    a(f"ds_write_b32 v25, v12 offset:{L_HH}")
    a("s_waitcnt lgkmcnt(0)")
    a("s_barrier")
    for q in range(4):
        if q: execm(0x000F000F << (4 * q))
        a(f"ds_read_b128 v[{HB+4*q}:{HB+4*q+3}], v26 offset:{L_HH}")
    a("s_mov_b64 exec, -1")
    for q in range(4):
        a(f"s_waitcnt lgkmcnt({3-q})")
        for u in range(2):
            d = 4 + 4 * u
            cc = "0" if q == 0 else f"v[{d}:{d+3}]"
            i = 4 * u + q
            a(f"v_mfma_f32_16x16x32_bf16 v[{d}:{d+3}], v[{DF+4*i}:{DF+4*i+3}], v[{HB+4*q}:{HB+4*q+3}], {cc}")
    for i in range(4): a(f"v_bfi_b32 v{4+i}, v28, s56, v{4+i}")
    a(f"buffer_store_dwordx4 v[4:7], v27, {sw}, s14 offen sc1")
    for i in range(4): a(f"v_bfi_b32 v{8+i}, v28, s56, v{8+i}")
    a(f"buffer_store_dwordx4 v[8:11], v27, {sw}, s14 offen offset:256 sc1")
    a("s_add_u32 s10, s13, s7")
    a("s_cmp_lg_u32 s10, 0")
    a("s_cbranch_scc1 L_noepoch")
    a("s_mov_b64 exec, 1")
    a("v_mov_b32 v2, 0"); a("v_mov_b32 v3, s56")
    a(f"buffer_store_dword v3, v2, {sw}, 0 offen sc1")
    a("L_noepoch:")
    ts(10)
    a("L_done2:")
    fin()
    if debug:
        a("L_fin:")
        a("s_mov_b64 exec, 1")
        srd(SW, P_WS, WS_END)
        a("s_lshl_b32 s10, s2, 3")
        a("s_add_u32 s10, s10, s3")
        a("s_lshl_b32 s10, s10, 6")
        a(f"s_add_u32 s10, s10, {WS_TS}")
        a("v_mov_b32 v2, 0")
        for k in range(12):
            a(f"v_mov_b32 v3, s{72+2*k}")
            a(f"buffer_store_dword v3, v2, {sw}, s10 offen offset:{4*k}")
        a("s_getreg_b32 s11, hwreg(HW_REG_XCC_ID)")
        a("v_mov_b32 v3, s11")
        a(f"buffer_store_dword v3, v2, {sw}, s10 offen offset:60")
    a("L_exit:")
    a("s_endpgm")
    body = a.finish()
    txt = HEADER + f"; @launch grid=(256,1,1) block=(512,1,1) lds={L_END}\n"
    txt += f""".amdgcn_target "amdgcn-amd-amdhsa--gfx950"
.text
.globl {KN}
.p2align 8
.type {KN},@function
{KN}:
{body}.section .rodata,"a"
.p2align 6
.amdhsa_kernel {KN}
  .amdhsa_next_free_vgpr 256
  .amdhsa_next_free_sgpr 102
  .amdhsa_accum_offset 256
  .amdhsa_group_segment_fixed_size 0
  .amdhsa_kernarg_size 112
  .amdhsa_user_sgpr_count 2
  .amdhsa_user_sgpr_kernarg_segment_ptr 1
  .amdhsa_system_sgpr_workgroup_id_x 1
  .amdhsa_float_denorm_mode_32 3
.end_amdhsa_kernel
"""
    return txt

if __name__ == "__main__":
    out = sys.argv[1] if len(sys.argv) > 1 else "adaLN_cond__gqa_block_cached__glu_gated_geglu__decode.s"
    kw = {}
    for arg in sys.argv[2:]:
        k, v = arg.split("=")
        kw[k] = v if k.endswith("pol") else int(v)
    open(out, "w").write(gen(**kw))
    print("wrote", out)
```

```python
import sys, math, struct
from asmlib import Asm

KN = "adaLN_cond__gqa_block_cached__glu_gated_geglu__decode_kernel"
HEADER = open("adaLN_cond__gqa_block_cached__glu_gated_geglu__decode.s.ref").read().split("; Override launch")[0]

WS_EPOCH, WS_MG, WS_ML, WS_X1, WS_Y, WS_Y2, WS_TS, WS_END = 0, 0x1000, 0x10000, 0x20000, 0x40000, 0xC0000, 0x180000, 0x200000
MG_B = 12288
L_QP, L_P, L_ML, L_CNT, L_F, L_OR, L_MODP, L_H1, L_H2, L_HH, L_STG, L_END = 0, 2048, 10496, 10560, 10576, 10752, 13056, 17152, 18176, 22528, 32768, 163840
OR_STRIDE, H2_STRIDE = 272, 1040
LOG2E = 0x3fb8aa3b
SCALE = 0x3db504f3
SPIN = 1 << 17
ARRIVE = 256 + 32
T2_LO, T1_LO, MOD_LO = 192, 128, 128

def f2u(x):
    return struct.unpack("<I", struct.pack("<f", x))[0]

def gen(D=8, DW=8, DWO=4, NL=0, debug=False, wpol="nt", qpol="nt", hmap=1, warm=1, nowo=0, nowq=0, noffn=0, prio=0):
    a = Asm()
    def ts(k):
        if debug:
            a(f"s_memrealtime s[{72+2*k}:{73+2*k}]")
            a("s_waitcnt lgkmcnt(0)")
    def srd(base, ptr, size):
        a(f"s_mov_b32 s{base}, s{ptr}"); a(f"s_mov_b32 s{base+1}, s{ptr+1}")
        a(f"s_mov_b32 s{base+2}, {size}"); a(f"s_mov_b32 s{base+3}, 0x20000")
    def mask64(s, lo):
        a(f"s_mov_b32 s{s}, {lo:#x}"); a(f"s_mov_b32 s{s+1}, {lo:#x}")
    def execm(lo):
        a(f"s_mov_b32 exec_lo, {lo:#x}"); a(f"s_mov_b32 exec_hi, {lo:#x}")
    def bf16r(v):
        a(f"v_cvt_pk_bf16_f32 v{v}, v{v}, v{v}")
        a(f"v_and_b32 v{v}, 0xffff0000, v{v}")
    def rndn(r, n, t):
        for i in range(n // 2): a(f"v_cvt_pk_bf16_f32 v{t+i}, v{r+2*i}, v{r+2*i+1}")
        for i in range(n // 2):
            a(f"v_lshlrev_b32 v{r+2*i}, 16, v{t+i}"); a(f"v_and_b32 v{r+2*i+1}, 0xffff0000, v{t+i}")
    def allreduce(op, v, t):
        for r in (1, 2, 4, 8):
            a(f"{op}_dpp v{v}, v{v}, v{v} row_ror:{r} row_mask:0xf bank_mask:0xf")
        for sw_ in ("v_permlane16_swap_b32", "v_permlane32_swap_b32"):
            a(f"v_mov_b32 v{t}, v{v}")
            a(f"{sw_} v{t}, v{v}")
            a(f"{op} v{v}, v{v}, v{t}")
    def spin_tail(cnt, label):
        a(f"s_sub_u32 s{cnt}, s{cnt}, 1")
        a(f"s_cmp_lg_u32 s{cnt}, 0")
        a(f"s_cbranch_scc1 {label}")
    def lds_wait(off, val, tag, sleep=4):
        a("v_mov_b32 v4, 0")
        a(f"s_mov_b32 s15, {SPIN}")
        a(f"L_{tag}:")
        a(f"ds_read_b32 v5, v4 offset:{off}")
        a("s_waitcnt lgkmcnt(0)")
        a(f"v_cmp_eq_u32 vcc, {val}, v5")
        a(f"s_cbranch_vccnz L_{tag}ok")
        a(f"s_sleep {sleep}")
        spin_tail(15, f"L_{tag}")
        a(f"L_{tag}ok:")
    def make_tag():
        a("s_add_u32 s10, s56, 1")
        a("s_and_b32 s10, s10, 0xff")
        a("s_mul_i32 s56, s56, 1664525")
        a("s_add_u32 s56, s56, 1013904223")
        a("s_andn2_b32 s56, s56, 0xff")
        a("s_or_b32 s56, s56, s10")
    def fin():
        a("s_branch L_fin" if debug else "s_endpgm")
    def ln_stats(x0, t0, vm, vs, tmp):
        a(f"v_add_f32 v{t0}, v{x0}, v{x0+1}"); a(f"v_add_f32 v{t0+1}, v{x0+2}, v{x0+3}")
        a(f"v_add_f32 v{t0+2}, v{x0+4}, v{x0+5}"); a(f"v_add_f32 v{t0+3}, v{x0+6}, v{x0+7}")
        a(f"v_add_f32 v{t0}, v{t0}, v{t0+1}"); a(f"v_add_f32 v{t0+2}, v{t0+2}, v{t0+3}")
        a(f"v_add_f32 v{vm}, v{t0}, v{t0+2}")
        allreduce("v_add_f32", vm, tmp)
        a(f"v_mul_f32 v{vm}, {f2u(1/512):#x}, v{vm}")
        for i in range(8): a(f"v_sub_f32 v{t0+i}, v{x0+i}, v{vm}")
        a(f"v_mul_f32 v{vs}, v{t0}, v{t0}"); a(f"v_mul_f32 v{tmp}, v{t0+1}, v{t0+1}")
        for i in (2, 4, 6):
            a(f"v_fmac_f32 v{vs}, v{t0+i}, v{t0+i}"); a(f"v_fmac_f32 v{tmp}, v{t0+i+1}, v{t0+i+1}")
        a(f"v_add_f32 v{vs}, v{vs}, v{tmp}")
        allreduce("v_add_f32", vs, tmp)
        bf16r(vm)
        a(f"v_mul_f32 v{vs}, {f2u(1/512):#x}, v{vs}")
        bf16r(vs)
        a(f"v_add_f32 v{vs}, {f2u(1e-5):#x}, v{vs}")
        bf16r(vs)
        a(f"v_sqrt_f32 v{vs}, v{vs}")
        bf16r(vs)
    WP = (" " + wpol) if wpol else ""
    QPOL = (" " + qpol) if qpol else ""
    P_X, P_K, P_V, P_WQ, P_WO, P_WG, P_WU, P_WD, P_C, P_WM, P_OUT, P_DBG, P_WS = 16, 18, 20, 22, 24, 28, 30, 32, 34, 36, 38, 40, 42
    SA, SB, SW = 44, 48, 52
    sa, sb_, sw = "s[44:47]", "s[48:51]", "s[52:55]"

    a("L_entry:")
    a("s_cmp_ge_u32 s2, 256")
    a("s_cbranch_scc1 L_exit")
    a("s_load_dwordx16 s[16:31], s[0:1], 0")
    a("s_load_dwordx8 s[32:39], s[0:1], 64")
    a("s_load_dwordx4 s[40:43], s[0:1], 96")
    if debug:
        for k in range(12): a(f"s_mov_b32 s{72+2*k}, 0")
    a("v_lshrrev_b32 v1, 6, v0")
    a("v_and_b32 v0, 63, v0")
    a("v_readfirstlane_b32 s3, v1")
    a("s_and_b32 s8, s2, 7")
    a("s_lshr_b32 s9, s2, 3")
    a("s_lshr_b32 s4, s9, 3")
    if hmap == 0:
        a("s_lshl_b32 s4, s4, 3")
        a("s_add_u32 s4, s4, s8")
    else:
        a("s_lshl_b32 s10, s8, 2")
        a("s_add_u32 s4, s4, s10")
    a("s_bfe_u32 s5, s9, 0x20001")
    a("s_and_b32 s6, s9, 1")
    a("v_lshrrev_b32 v30, 4, v0")
    a("v_and_b32 v31, 15, v0")
    a("s_cmp_ge_u32 s3, 4")
    a("s_cbranch_scc1 L_service")

    a("v_lshrrev_b32 v3, 2, v31")
    a("v_and_b32 v4, 3, v31")
    a("v_lshlrev_b32 v1, 8, v3")
    a("v_lshl_add_u32 v1, v4, 4, v1")
    a("v_lshl_add_u32 v1, v30, 6, v1")
    a("v_lshlrev_b32 v2, 4, v0")
    a("s_lshl_b32 s57, s5, 5")
    a("s_add_u32 s57, s57, s4")
    a("s_lshl_b32 s57, s57, 20")
    a("s_lshl_b32 s10, s6, 19")
    a("s_add_u32 s57, s57, s10")
    a("s_lshl_b32 s10, s3, 12")
    a("s_add_u32 s57, s57, s10")
    a("s_mov_b32 s58, s57")
    a("s_waitcnt lgkmcnt(0)")
    ts(0)
    srd(SA, P_K, 128 << 20); srd(SB, P_V, 128 << 20)
    NSLOT = 48
    PRE = NSLOT - 4
    def in_lds(q): return PRE <= q < PRE + NL
    regq = [q for q in range(128) if not in_lds(q)]
    rslot = {q: i % NSLOT for i, q in enumerate(regq)}
    vbase = (rslot[regq[-1]] + 1) % NSLOT
    def slot(q):
        return 64 + 4 * (rslot[q] if q < 128 else (vbase + (q - 128) % D) % NSLOT)
    def issue(q, wait=True):
        if wait: a(f"s_waitcnt vmcnt({D-1})")
        r = q & 3
        off = f" offset:{r*1024}" if r else ""
        if in_lds(q):
            if r == 0:
                a(f"s_add_u32 m0, s14, {(q-PRE)*1024}")
            a(f"buffer_load_dwordx4 v1, {sa}, s57 offen{off} nt lds")
            if r == 3: a("s_add_u32 s57, s57, 16384")
            return
        s = slot(q)
        if q < 128:
            a(f"buffer_load_dwordx4 v[{s}:{s+3}], v1, {sa}, s57 offen{off} nt")
            if r == 3: a("s_add_u32 s57, s57, 16384")
        else:
            a(f"buffer_load_dwordx4 v[{s}:{s+3}], v2, {sb_}, s58 offen{off} nt")
            if r == 3: a("s_add_u32 s58, s58, 16384")
    for q in range(D): issue(q, wait=False)
    a("s_load_dword s56, s[42:43], 0")
    for j in range(4): mask64(60 + 2 * j, (0x000F000F << (4 * j)))
    mask64(68, 0xAAAAAAAA); mask64(70, 0xCCCCCCCC)
    a("s_lshl_b32 s14, s3, 15")
    a(f"s_add_u32 s14, s14, {L_STG}")
    a("v_add_u32 v59, s14, v2")
    a("v_lshlrev_b32 v29, 5, v4")
    a("v_lshl_add_u32 v29, v30, 7, v29")
    a("s_lshl_b32 s10, s3, 11")
    a(f"s_add_u32 s10, s10, {L_P}")
    a("v_lshlrev_b32 v28, 6, v4")
    a("v_lshl_add_u32 v28, v30, 4, v28")
    a("v_lshl_add_u32 v28, v3, 2, v28")
    a("v_add_u32 v56, s10, v28")
    a("v_lshl_add_u32 v3, v30, 4, s10")
    a("v_and_b32 v8, 1, v31")
    a("v_cmp_eq_u32 vcc, 1, v8")
    a("v_mov_b32 v9, 0xffff")
    a("v_mov_b32 v10, 0xffff0000")
    a("v_cndmask_b32 v9, v9, v10, vcc")
    a("v_bfe_u32 v8, v31, 1, 2")
    for w in range(4):
        a(f"v_cmp_eq_u32 vcc, {w}, v8")
        a(f"v_cndmask_b32 v{4+w}, 0, v9, vcc")
    a("v_mov_b32 v57, 0xff800000")
    a("s_waitcnt lgkmcnt(0)")
    make_tag()
    a("s_barrier")
    for q in range(D, PRE + NL): issue(q)
    ts(1)
    a("s_barrier")
    ts(2)
    for w in range(4):
        d = 32 + 8 * w if w < 3 else 8
        a(f"ds_read_b128 v[{d}:{d+3}], v29 offset:{L_QP + w*512}")
        a(f"ds_read_b128 v[{d+4}:{d+7}], v29 offset:{L_QP + w*512 + 16}")
    issue(PRE + NL)
    a("s_waitcnt lgkmcnt(0)")
    for i in range(8):
        a(f"v_add_f32 v{32+i}, v{32+i}, v{40+i}")
        a(f"v_add_f32 v{8+i}, v{8+i}, v{48+i}")
    for i in range(8):
        a(f"v_add_f32 v{8+i}, v{8+i}, v{32+i}")
    for i in range(4):
        a(f"v_cvt_pk_bf16_f32 v{24+i}, v{8+2*i}, v{9+2*i}")
    for j in range(4):
        for i in range(4):
            a(f"v_cndmask_b32 v{32+4*j+i}, 0, v{24+i}, s[{60+2*j}:{61+2*j}]")
    a(f"s_mov_b32 s59, {SCALE:#x}")
    LT = 64 + 4 * 24
    def consume(q):
        t, j = q >> 2, q & 3
        acc = 8 + 4 * (t & 3)
        if in_lds(q):
            if j == 0:
                for jj in range(4):
                    a(f"ds_read_b128 v[{LT+4*jj}:{LT+4*jj+3}], v59 offset:{(q-PRE+jj)*1024}")
            a(f"s_waitcnt lgkmcnt({3-j})")
            s = LT + 4 * j
        else:
            s = slot(q)
        c = "0" if j == 0 else f"v[{acc}:{acc+3}]"
        a(f"v_mfma_f32_16x16x32_bf16 v[{acc}:{acc+3}], v[{s}:{s+3}], v[{32+4*j}:{35+4*j}], {c}")
        if (q & 15) == 15:
            u = q >> 4
            for i in range(4):
                a(f"v_mov_b32_dpp v{24+i}, v{8+4*i} quad_perm:[0,0,0,0] row_mask:0xf bank_mask:0xf")
            for r in (1, 2, 3):
                for i in range(4):
                    a(f"v_add_f32_dpp v{24+i}, v{8+4*i+r}, v{24+i} quad_perm:[{r},{r},{r},{r}] row_mask:0xf bank_mask:0xf")
            a("v_cndmask_b32 v24, v24, v25, s[68:69]")
            a("v_cndmask_b32 v26, v26, v27, s[68:69]")
            a("v_cndmask_b32 v24, v24, v26, s[70:71]")
            bf16r(24)
            a("v_mul_f32 v24, s59, v24")
            a("v_cvt_pk_bf16_f32 v24, v24, v24")
            a(f"v_and_b32 v{48+u}, 0xffff0000, v24")
            a(f"v_max_f32 v57, v57, v{48+u}")
    issued, consumed = PRE + NL + 1, 0
    live = {slot(q): q for q in range(issued) if not in_lds(q)}
    while consumed < 128:
        landed = issued - D
        n = 0
        while consumed < min(landed, 128) and n < 12:
            if in_lds(consumed):
                if (consumed | 3) >= landed: break
                for jj in range(4): assert live.get(LT + 4 * jj, -1) < consumed, "LDS staging slot busy"
            consume(consumed); consumed += 1; n += 1
        if issued < 128 + D:
            assert live.get(slot(issued), -1) < consumed, "ring slot busy"
            if consumed < PRE + NL: assert not (LT <= slot(issued) < LT + 16)
            live[slot(issued)] = issued
            issue(issued); issued += 1
    ts(3)
    allreduce("v_max_f32", 57, 24)
    a(f"s_mov_b32 s59, {LOG2E:#x}")
    a("v_mul_f32 v25, s59, v57")
    for u in range(8):
        a(f"v_fma_f32 v{48+u}, v{48+u}, s59, -v25")
    for u in range(8):
        a(f"v_exp_f32 v{48+u}, v{48+u}")
    for u in range(8):
        a(f"v_cvt_pk_bf16_f32 v{8+u}, v{48+u}, v{48+u}")
        a(f"ds_write_b32 v56, v{8+u} offset:{u*256}")
    a("ds_read_b128 v[12:15], v3")
    a("ds_read_b128 v[16:19], v3 offset:64")
    a("v_add_f32 v48, v48, v49"); a("v_add_f32 v50, v50, v51"); a("v_add_f32 v52, v52, v53"); a("v_add_f32 v54, v54, v55")
    a("v_add_f32 v48, v48, v50"); a("v_add_f32 v52, v52, v54"); a("v_add_f32 v58, v48, v52")
    allreduce("v_add_f32", 58, 24)
    a("v_mov_b32 v26, v57"); a("v_mov_b32 v27, v58")
    a("s_lshl_b32 s10, s3, 3")
    a("v_mov_b32 v24, s10")
    a("v_mov_b32 v25, 1")
    a(f"ds_write_b64 v24, v[26:27] offset:{L_ML}")
    a("v_mov_b32 v24, 0")
    a("s_mov_b64 exec, 1")
    a(f"ds_add_u32 v24, v25 offset:{L_CNT+4}")
    a("s_mov_b64 exec, -1")
    a("s_waitcnt lgkmcnt(0)")
    for j in range(4):
        for w in range(4):
            a(f"v_and_b32 v{32+4*j+w}, v{12+j}, v{4+w}")
    for i in range(4): a(f"v_mov_b32 v{8+i}, 0")
    a("v_add_u32 v3, 128, v3")
    ts(4)
    def vstep(v, rel, load, waitn, build):
        t, j = v >> 2, v & 3
        ab, ob = 32 + 16 * (t & 1), 32 + 16 * ((t + 1) & 1)
        ppn, ppf = 12 + 4 * ((t + 1) & 1), 12 + 4 * (t & 1)
        s = slot(128 + v)
        if j == 0 and build:
            a("s_waitcnt lgkmcnt(0)")
            a(f"ds_read_b128 v[{ppf}:{ppf+3}], v3 offset:{rel*64}")
        a(f"s_waitcnt vmcnt({waitn})")
        a(f"v_mfma_f32_16x16x32_bf16 v[8:11], v[{ab+4*j}:{ab+4*j+3}], v[{s}:{s+3}], v[8:11]")
        if load: issue(128 + v + D, wait=False)
        if build:
            for w in range(4):
                a(f"v_and_b32 v{ob+4*j+w}, v{ppn+j}, v{4+w}")
    UL = D * 8 // math.gcd(D, 8)
    nit = (128 - D) // UL
    a(f"s_mov_b32 s11, {nit}")
    a("L_vloop:")
    for v in range(UL): vstep(v, v >> 2, True, D - 1, True)
    a(f"v_add_u32 v3, {UL//4*64}, v3")
    spin_tail(11, "L_vloop")
    base = nit * UL
    a("s_lshl_b32 s10, s3, 2")
    a("v_mov_b32 v24, s10")
    a(f"s_mov_b32 s11, {SPIN}")
    a("L_fwait:")
    a(f"ds_read_b32 v25, v24 offset:{L_F}")
    a("s_waitcnt lgkmcnt(0)")
    a("v_cmp_ne_u32 vcc, -1, v25")
    a("s_cbranch_vccnz L_fok")
    a("s_sleep 2")
    spin_tail(11, "L_fwait")
    a("L_fok:")
    a("v_and_b32 v26, 1, v30")
    a("v_lshlrev_b32 v26, 3, v26")
    a("v_lshl_add_u32 v26, v31, 4, v26")
    a(f"s_mul_i32 s10, s3, {OR_STRIDE}")
    a("v_add_u32 v26, s10, v26")
    for v in range(base, 128):
        ld = v + D < 128
        vstep(v, (v - base) >> 2, ld, D - 1 if ld else 127 - v, v < 124)
    ts(5)
    for i in range(4): a(f"v_mul_f32 v{8+i}, v{8+i}, v25")
    a("v_cvt_pk_bf16_f32 v12, v8, v9")
    a("v_cvt_pk_bf16_f32 v13, v10, v11")
    a(f"ds_write_b64 v26, v[12:13] offset:{L_OR}")
    a("v_lshlrev_b32 v14, 16, v12"); a("v_and_b32 v15, 0xffff0000, v12")
    a("v_lshlrev_b32 v16, 16, v13"); a("v_and_b32 v17, 0xffff0000, v13")
    for i in range(4): a(f"v_sub_f32 v{8+i}, v{8+i}, v{14+i}")
    a("v_cvt_pk_bf16_f32 v18, v8, v9")
    a("v_cvt_pk_bf16_f32 v19, v10, v11")
    a(f"ds_write_b64 v26, v[18:19] offset:{L_OR + 4*OR_STRIDE}")
    a("s_waitcnt lgkmcnt(0)")
    a("s_barrier")
    a("s_cmp_lg_u32 s3, 0")
    a("s_cbranch_scc1 L_done")
    a(f"s_cmp_lt_u32 s2, {T1_LO}")
    a("s_cbranch_scc1 L_done")
    srd(SW, P_WS, WS_END)
    srd(SA, P_X, 4096)
    srd(SB, P_OUT, 4096)
    a("s_bfe_u32 s12, s2, 0x20005")
    a("s_and_b32 s13, s2, 31")
    a("v_lshrrev_b32 v29, 2, v0")
    a("v_lshlrev_b32 v1, 11, v29")
    a("v_and_b32 v2, 3, v0")
    a("v_lshl_add_u32 v1, v2, 4, v1")
    a("s_lshl_b32 s10, s12, 17")
    a("s_lshl_b32 s11, s13, 6")
    a("s_add_u32 s10, s10, s11")
    a(f"s_add_u32 s60, s10, {WS_Y}")
    for u in (1, 2, 3): a(f"s_add_u32 s{60+u}, s60, {u*32768}")
    a("v_lshrrev_b32 v3, 1, v30")
    a("v_and_b32 v4, 1, v30")
    a("v_lshl_add_u32 v5, v2, 1, v4")
    a("v_lshl_add_u32 v4, v5, 1, v3")
    a("v_lshlrev_b32 v5, 3, v5")
    a("v_lshlrev_b32 v41, 4, v3")
    a("v_lshlrev_b32 v3, 1, v4")
    a("v_lshlrev_b32 v4, 2, v4")
    a(f"s_mul_i32 s10, s12, {MG_B}")
    a("s_add_u32 s10, s10, s11")
    a(f"s_add_u32 s10, s10, {WS_MG + 2*2048}")
    a(f"s_add_u32 s66, s10, {3*2048}")
    a("s_lshl_b32 s14, s12, 10")
    a("s_lshl_b32 s67, s13, 5")
    a("s_add_u32 s14, s14, s67")
    a(f"buffer_load_ushort v7, v3, {sa}, s14 offen")
    a(f"buffer_load_dwordx2 v[42:43], v5, {sw}, s10 offen sc1")
    a(f"buffer_load_dwordx2 v[44:45], v5, {sw}, s66 offen sc1")
    a("v_mov_b32 v40, 0xff")
    def gather_poll(tag, nload, offs):
        a(f"s_mov_b32 s15, {SPIN}")
        a(f"L_{tag}poll:")
        for u in range(nload):
            a(f"buffer_load_dwordx4 v[{8+4*u}:{11+4*u}], v{offs[u]}, {sw}, s{60+u} offen sc1")
        a("s_waitcnt vmcnt(0)")
        for i in range(2 * nload):
            a(f"v_bitop3_b32 v{32+i}, v{8+2*i}, v{9+2*i}, s56 bitop3:0x7e")
        if nload == 4:
            a("v_or3_b32 v32, v32, v33, v34"); a("v_or3_b32 v35, v35, v36, v37"); a("v_or3_b32 v32, v32, v38, v39")
        else:
            a("v_or_b32 v36, v36, v37"); a("v_or3_b32 v32, v32, v33, v34")
            a("v_cndmask_b32 v36, 0, v36, s[64:65]")
            a("v_or_b32 v35, v35, v36")
        a("v_bitop3_b32 v32, v32, v35, v40 bitop3:0xa8")
        a("v_cmp_ne_u32 vcc, 0, v32")
        a(f"s_cbranch_vccz L_{tag}ok")
        a("s_mov_b64 exec, vcc")
        spin_tail(15, f"L_{tag}poll")
        a(f"L_{tag}ok:")
        a("s_mov_b64 exec, -1")
    def gather_sum(nload):
        for i in range(4):
            a(f"v_add_f32 v{8+i}, v{8+i}, v{12+i}")
            if nload == 4: a(f"v_add_f32 v{16+i}, v{16+i}, v{20+i}")
        for i in range(4): a(f"v_add_f32 v{8+i}, v{8+i}, v{16+i}")
        a("v_permlane32_swap_b32 v8, v9")
        a("v_permlane32_swap_b32 v10, v11")
        a("v_add_f32 v8, v8, v9")
        a("v_add_f32 v10, v10, v11")
        a("v_permlane16_swap_b32 v8, v10")
        a("v_add_f32 v8, v8, v10")
        a("v_add_f32_dpp v8, v8, v8 row_ror:4 row_mask:0xf bank_mask:0xf")
        a("v_add_f32_dpp v8, v8, v8 row_ror:8 row_mask:0xf bank_mask:0xf")
    gather_poll("t1", 4, [1, 1, 1, 1])
    a(f"s_mov_b32 s15, {SPIN}")
    a("L_gchk:")
    a("v_bitop3_b32 v32, v43, v45, s56 bitop3:0x7e")
    a("v_cmp_ne_u32 vcc, 0, v32")
    a("s_cbranch_vccz L_gok")
    a(f"buffer_load_dwordx2 v[42:43], v5, {sw}, s10 offen sc1")
    a(f"buffer_load_dwordx2 v[44:45], v5, {sw}, s66 offen sc1")
    a("s_waitcnt vmcnt(0)")
    spin_tail(15, "L_gchk")
    a("L_gok:")
    ts(6)
    a(f"s_sub_u32 s10, s2, {T2_LO}")
    a("s_cmp_ge_u32 s10, 43")
    a("s_cbranch_scc1 L_t1nobar")
    a("s_barrier")
    a("L_t1nobar:")
    a("v_lshrrev_b32 v6, v41, v42")
    a("v_lshlrev_b32 v6, 16, v6")
    a("v_lshlrev_b32 v7, 16, v7")
    gather_sum(4)
    bf16r(8)
    a("v_mul_f32 v8, v8, v6")
    bf16r(8)
    a("v_add_f32 v7, v8, v7")
    bf16r(7)
    a("s_lshl_b32 s10, s12, 11")
    a("s_add_u32 s10, s10, s11")
    a(f"s_add_u32 s60, s10, {WS_X1}")
    a("v_and_or_b32 v9, s56, v40, v7")
    execm(0x000f000f)
    a(f"buffer_store_dword v9, v4, {sw}, s60 offen sc1")
    a("s_mov_b64 exec, -1")
    ts(7)
    a("v_lshlrev_b32 v1, 13, v29")
    a("v_lshl_add_u32 v1, v2, 4, v1")
    a("v_cmp_gt_u32 vcc, 11, v29")
    a("v_mov_b32 v5, 0x7ffffff0")
    a("v_cndmask_b32 v5, v5, v1, vcc")
    a("s_mov_b64 s[64:65], vcc")
    a(f"s_add_u32 s60, s10, {WS_Y2}")
    a(f"s_add_u32 s61, s60, {16*8192}")
    a(f"s_add_u32 s62, s60, {32*8192}")
    a("v_lshrrev_b32 v28, v41, v44")
    a("v_lshlrev_b32 v28, 16, v28")
    a(f"s_sub_u32 s10, s2, {T2_LO}")
    a("s_cmp_ge_u32 s10, 43")
    a("s_cbranch_scc1 L_t3nobar")
    a("s_barrier")
    a("s_barrier")
    a("L_t3nobar:")
    gather_poll("t3", 3, [1, 1, 5])
    ts(8)
    gather_sum(3)
    bf16r(8)
    a("v_mul_f32 v8, v8, v28")
    bf16r(8)
    a("v_add_f32 v8, v8, v7")
    a("v_cvt_pk_bf16_f32 v8, v8, v8")
    execm(0x000f000f)
    a(f"buffer_store_short v8, v3, {sb_}, s14 offen")
    ts(9)
    if debug == 2:
        a("s_mov_b64 exec, 1")
        a("s_not_b32 s72, s72")
        a("v_mov_b32 v2, 0")
        for k in range(10):
            a(f"v_mov_b32 v3, s{72+2*k}")
            a(f"global_atomic_umax v2, v3, s[40:41] offset:{4*k}")
        a("s_not_b32 s82, s82")
        a("v_mov_b32 v3, s82")
        a("global_atomic_umax v2, v3, s[40:41] offset:40")
    a("L_done:")
    fin()

    RG = lambda i: 96 + 32 * i
    ACC = RG(4)
    def mod_loads():
        srd(SA, P_C, 4096)
        a("v_and_b32 v2, 3, v31")
        a("v_lshlrev_b32 v2, 10, v2")
        a("v_lshrrev_b32 v3, 2, v31")
        a("v_lshl_add_u32 v2, v3, 6, v2")
        a("v_lshl_add_u32 v2, v30, 4, v2")
        a("s_lshl_b32 s10, s7, 8")
        a(f"buffer_load_dwordx4 v[16:19], v2, {sa}, s10 offen")
        srd(SA, P_WM, 512 * 6144)
        a("v_mul_u32_u24 v2, 49152, v30")
        a("v_lshl_add_u32 v2, v31, 3, v2")
        a(f"s_mul_i32 s10, s7, {128*6144}")
        a("s_lshl_b32 s11, s13, 7")
        a("s_add_u32 s10, s10, s11")
        for ks in range(4):
            for e in range(8):
                r = 32 + ks * 16 + 2 * e
                a(f"buffer_load_dwordx2 v[{r}:{r+1}], v2, {sa}, s10 offen{WP}")
                a(f"s_add_u32 s10, s10, {6144 if e < 7 else 6144*25}")
    def mod_silu(T):
        a("s_waitcnt vmcnt(32)")
        hi, lo = -1.4426950216293335, -1.925963033500011e-08
        a(f"s_mov_b32 s59, {f2u(hi):#x}")
        a(f"s_mov_b32 s58, {f2u(lo):#x}")
        X, E, L_, R = T, T + 8, T + 16, T + 24
        for i in range(4):
            a(f"v_lshlrev_b32 v{X+2*i}, 16, v{16+i}"); a(f"v_and_b32 v{X+2*i+1}, 0xffff0000, v{16+i}")
        for i in range(8): a(f"v_mul_f32 v{E+i}, s59, v{X+i}")
        for i in range(8): a(f"v_fma_f32 v{L_+i}, v{X+i}, s59, -v{E+i}")
        for i in range(8): a(f"v_fmac_f32 v{L_+i}, s58, v{X+i}")
        for i in range(8): a(f"v_exp_f32 v{E+i}, v{E+i}")
        for i in range(8): a(f"v_mul_f32 v{L_+i}, {f2u(math.log(2.0)):#x}, v{L_+i}")
        for i in range(8): a(f"v_min_f32 v{E+i}, {f2u(1e37):#x}, v{E+i}")
        for i in range(8): a(f"v_fmac_f32 v{E+i}, v{E+i}, v{L_+i}")
        for i in range(8): a(f"v_add_f32 v{E+i}, 1.0, v{E+i}")
        for i in range(8): a(f"v_rcp_f32 v{R+i}, v{E+i}")
        for i in range(8): a(f"v_mul_f32 v{L_+i}, v{X+i}, v{R+i}")
        for i in range(8): a(f"v_fma_f32 v{E+i}, -v{L_+i}, v{E+i}, v{X+i}")
        for i in range(8): a(f"v_fmac_f32 v{L_+i}, v{E+i}, v{R+i}")
        for i in range(4): a(f"v_cvt_pk_bf16_f32 v{4+i}, v{L_+2*i}, v{L_+2*i+1}")
        for q in (1, 2, 3):
            for i in range(4):
                a(f"v_mov_b32_dpp v{4+4*q+i}, v{4+i} row_shl:{4*q} row_mask:0xf bank_mask:0xf")
    def mod_rest(T, extra, tag, arrive):
        for ks in range(4):
            a(f"s_waitcnt vmcnt({extra + 8*(3-ks)})")
            for c in range(4):
                for t in range(4):
                    r = 32 + ks * 16
                    a(f"v_perm_b32 v{T+c*4+t}, v{r+2*(2*t+1)+(c>>1)}, v{r+2*(2*t)+(c>>1)}, s{62+(c&1)}")
            for c in range(4):
                d = T + 16 + 4 * c
                cc = "0" if ks == 0 else f"v[{d}:{d+3}]"
                a(f"v_mfma_f32_16x16x32_bf16 v[{d}:{d+3}], v[{4+4*ks}:{7+4*ks}], v[{T+c*4}:{T+c*4+3}], {cc}")
        a("s_lshl_b32 s10, s7, 10")
        a("v_lshl_add_u32 v25, v31, 6, s10")
        a("s_mov_b64 exec, 0xffff")
        for c in range(4):
            a(f"ds_write_b128 v25, v[{T+16+4*c}:{T+19+4*c}] offset:{L_MODP+16*c}")
        a("s_mov_b64 exec, 1")
        a("v_mov_b32 v26, 0"); a("v_mov_b32 v27, 1")
        a(f"ds_add_rtn_u32 v26, v26, v27 offset:{L_CNT}")
        a("s_mov_b64 exec, -1")
        a("v_lshlrev_b32 v25, 6, v31")
        a("v_lshl_add_u32 v25, v30, 2, v25")
        a(f"v_add_u32 v25, {L_MODP}, v25")
        a("v_add_u32 v24, 2048, v25")
        a("s_waitcnt lgkmcnt(0)")
        a("v_readfirstlane_b32 s10, v26")
        a("s_cmp_lg_u32 s10, 3")
        a(f"s_cbranch_scc1 L_{tag}end")
        for c in range(4):
            a(f"ds_read2st64_b32 v[{4+2*c}:{5+2*c}], v25 offset0:0 offset1:4")
            a(f"ds_read2st64_b32 v[{12+2*c}:{13+2*c}], v24 offset0:0 offset1:4")
            if c < 3:
                a("v_add_u32 v25, 16, v25"); a("v_add_u32 v24, 16, v24")
        a(f"v_mul_u32_u24 v2, {MG_B}, v30")
        a("v_lshl_add_u32 v2, v31, 4, v2")
        a("s_lshl_b32 s10, s13, 8")
        a(f"s_add_u32 s10, s10, {WS_MG}")
        a("s_lshr_b32 s11, s13, 3")
        a("s_waitcnt lgkmcnt(0)")
        for c in range(4):
            a(f"v_add_f32 v{4+2*c}, v{4+2*c}, v{5+2*c}"); a(f"v_add_f32 v{12+2*c}, v{12+2*c}, v{13+2*c}")
        for c in range(4): a(f"v_add_f32 v{20+c}, v{4+2*c}, v{12+2*c}")
        a("s_cmp_eq_u32 s11, 1")
        a(f"s_cbranch_scc1 L_{tag}one")
        a("s_cmp_lg_u32 s11, 4")
        a(f"s_cbranch_scc1 L_{tag}st")
        a(f"L_{tag}one:")
        rndn(20, 4, 4)
        for c in range(4): a(f"v_add_f32 v{20+c}, 1.0, v{20+c}")
        a(f"L_{tag}st:")
        a("v_cvt_pk_bf16_f32 v4, v20, v21"); a("v_mov_b32 v5, s56")
        a("v_cvt_pk_bf16_f32 v6, v22, v23"); a("v_mov_b32 v7, s56")
        a(f"buffer_store_dwordx4 v[4:7], v2, {sw}, s10 offen sc1")
        if not arrive: ts(1)
        a(f"L_{tag}end:")
    def warm_code(v, n0, n1):
        a("s_getpc_b64 s[10:11]")
        lab = a.label("L_pc")
        a(f"{lab}:")
        a(f"s_sub_u32 s10, s10, {lab}-L_entry")
        a("s_subb_u32 s11, s11, 0")
        a(f"v_lshlrev_b32 v{v}, 7, v0")
        if n0: a(f"v_add_u32 v{v}, {n0*8192}, v{v}")
        for i in range(n0, n1):
            a(f"v_cmp_gt_u32 vcc, L_exit-L_entry, v{v}")
            a("s_and_saveexec_b64 s[64:65], vcc")
            skip = a.label("L_wsk")
            a(f"s_cbranch_execz {skip}")
            a(f"global_load_dword v{v+1}, v{v}, s[10:11]")
            a(f"{skip}:")
            a("s_mov_b64 exec, s[64:65]")
            a(f"v_add_u32 v{v}, 8192, v{v}")

    a("L_service:")
    if prio: a(f"s_setprio {prio}")
    a("s_sub_u32 s7, s3, 4")
    a("s_mov_b32 s62, 0x05040100"); a("s_mov_b32 s63, 0x07060302")
    a("s_mov_b32 s12, 0")
    a("s_cmp_ge_u32 s2, 64")
    a("s_cbranch_scc1 L_norole")
    a("s_cmp_lt_u32 s8, 2")
    a("s_cselect_b32 s12, 1, 0")
    a("L_norole:")
    a("v_lshlrev_b32 v1, 16, v30")
    a("v_lshl_add_u32 v1, v31, 4, v1")
    a("v_mov_b32 v4, 0"); a("v_mov_b32 v5, 0"); a("v_mov_b32 v6, 0"); a("v_mov_b32 v7, 0")
    a("v_mov_b32 v8, -1"); a("v_mov_b32 v9, -1"); a("v_mov_b32 v10, -1"); a("v_mov_b32 v11, -1")
    a(f"ds_write_b128 v4, v[4:7] offset:{L_CNT}")
    a(f"ds_write_b128 v4, v[8:11] offset:{L_F}")
    a("s_waitcnt lgkmcnt(0)")
    ts(0)
    a("s_load_dword s56, s[42:43], 0")
    srd(SW, P_WS, WS_END)
    a("s_cmp_eq_u32 s12, 0")
    a("s_cbranch_scc1 L_noprod1")
    a("s_lshl_b32 s13, s8, 3")
    a("s_add_u32 s13, s13, s9")
    mod_loads()
    mod_silu(RG(1))
    a("s_waitcnt vmcnt(8)")
    a("L_noprod1:")
    srd(SA, P_WQ, 512 * 8192)
    a("s_lshl_b32 s57, s7, 20")
    a("s_lshl_b32 s10, s4, 8")
    a("s_add_u32 s57, s57, s10")
    def wq_issue(i):
        ks, e = i >> 3, i & 7
        r = RG(ks + 1) + 4 * e
        if not nowq: a(f"buffer_load_dwordx4 v[{r}:{r+3}], v1, {sa}, s57 offen{QPOL}")
        a(f"s_add_u32 s57, s57, {8192 if e < 7 else 8192*25}")
    for i in range(DW): wq_issue(i)
    a("s_waitcnt lgkmcnt(0)")
    a("s_barrier")
    make_tag()
    a("s_cmp_eq_u32 s12, 0")
    a("s_cbranch_scc1 L_m1end")
    mod_rest(RG(0), 0 if nowq else DW, "m1", False)
    srd(SB, P_X, 4096)
    a("v_lshlrev_b32 v2, 4, v0")
    a("s_lshl_b32 s10, s5, 10")
    a(f"buffer_load_dwordx4 v[32:35], v2, {sb_}, s10 offen")
    a("v_lshlrev_b32 v2, 2, v0")
    a("s_lshl_b32 s11, s7, 8")
    a("s_add_u32 s10, s10, s11")
    a(f"buffer_load_dword v36, v2, {sb_}, s10 offen")
    if warm:
        a("s_cmp_lg_u32 s7, 3")
        a("s_cbranch_scc1 L_nowarm1")
        warm_code(60, 0, 4)
        a("L_nowarm1:")
    def perms(ks):
        for c in range(8):
            for t in range(4):
                a(f"v_perm_b32 v{RG(ks)+c*4+t}, v{RG(ks+1)+4*(2*t+1)+(c>>1)}, v{RG(ks+1)+4*(2*t)+(c>>1)}, s{62+(c&1)}")
    done = 0
    for i in range(DW, 32):
        a(f"s_waitcnt vmcnt({DW-1})")
        wq_issue(i)
        while (done + 1) * 8 <= i + 1 - DW:
            perms(done); done += 1
    a("v_lshlrev_b32 v2, 3, v0")
    a(f"s_mul_i32 s10, s5, {MG_B}")
    a("s_lshl_b32 s11, s7, 9")
    a("s_add_u32 s10, s10, s11")
    a(f"s_add_u32 s10, s10, {WS_MG}")
    a(f"buffer_load_dwordx2 v[4:5], v2, {sw}, s10 offen sc1")
    a(f"buffer_load_dwordx2 v[6:7], v2, {sw}, s10 offen offset:2048 sc1")
    a(f"s_waitcnt vmcnt({2 if nowq else min(32-DW, DW)+2})")
    for i in range(4):
        a(f"v_lshlrev_b32 v{40+2*i}, 16, v{32+i}"); a(f"v_and_b32 v{41+2*i}, 0xffff0000, v{32+i}")
    ln_stats(40, 48, 56, 57, 58)
    a("v_rcp_f32 v57, v57")
    a("v_lshlrev_b32 v38, 16, v36"); a("v_and_b32 v39, 0xffff0000, v36")
    a("v_sub_f32 v38, v38, v56"); a("v_sub_f32 v39, v39, v56")
    rndn(38, 2, 58)
    a("v_mul_f32 v38, v38, v57"); a("v_mul_f32 v39, v39, v57")
    rndn(38, 2, 58)
    a("s_lshl_b32 s11, s7, 8")
    a(f"s_add_u32 s11, s11, {L_H1}")
    a("v_lshl_add_u32 v28, v0, 2, s11")
    a("v_lshl_add_u32 v29, v30, 4, s11")
    while done < 4:
        a(f"s_waitcnt vmcnt({2 + 8*(3-done)})")
        perms(done); done += 1
    a(f"s_mov_b32 s15, {SPIN}")
    ts(2)
    a("s_branch L_hchk")
    a("L_hpoll:")
    a(f"buffer_load_dwordx2 v[4:5], v2, {sw}, s10 offen sc1")
    a(f"buffer_load_dwordx2 v[6:7], v2, {sw}, s10 offen offset:2048 sc1")
    a("L_hchk:")
    a("s_waitcnt vmcnt(0)")
    a("v_xor_b32 v8, s56, v5"); a("v_xor_b32 v9, s56, v7")
    a("v_or_b32 v8, v8, v9")
    a("v_cmp_ne_u32 vcc, 0, v8")
    a("s_cbranch_vccz L_hok")
    spin_tail(15, "L_hpoll")
    a("L_hok:")
    ts(3)
    a("v_lshlrev_b32 v8, 16, v6"); a("v_and_b32 v9, 0xffff0000, v6")
    a("v_mul_f32 v8, v8, v38"); a("v_mul_f32 v9, v9, v39")
    a("v_lshlrev_b32 v10, 16, v4"); a("v_and_b32 v11, 0xffff0000, v4")
    rndn(8, 2, 12)
    a("v_add_f32 v8, v8, v10"); a("v_add_f32 v9, v9, v11")
    a("v_cvt_pk_bf16_f32 v8, v8, v9")
    a("ds_write_b32 v28, v8")
    for ks in range(4):
        a(f"ds_read_b128 v[{12+4*ks}:{15+4*ks}], v29 offset:{ks*64}")
    def gemv32():
        for ks in range(4):
            a(f"s_waitcnt lgkmcnt({3-ks})")
            for c in range(8):
                cc = "0" if ks == 0 else f"v[{ACC+4*c}:{ACC+4*c+3}]"
                a(f"v_mfma_f32_16x16x32_bf16 v[{ACC+4*c}:{ACC+4*c+3}], v[{12+4*ks}:{15+4*ks}], v[{RG(ks)+4*c}:{RG(ks)+4*c+3}], {cc}")
    a("s_lshl_b32 s10, s7, 9")
    a("v_lshl_add_u32 v2, v31, 5, s10")
    gemv32()
    for c in range(0, 8, 2):
        a(f"ds_write2_b32 v2, v{ACC+4*c}, v{ACC+4*c+4} offset0:{c} offset1:{c+1}")
    a("s_waitcnt lgkmcnt(0)")
    ts(4)
    a("s_barrier")
    a(f"s_sub_u32 s12, s2, {T2_LO}")
    a("s_cmp_lt_u32 s12, 43")
    a("s_cselect_b32 s12, 1, 0")
    a(f"s_sub_u32 s13, s2, {MOD_LO}")
    a("s_cmp_ge_u32 s13, 32")
    a("s_cbranch_scc1 L_m2end")
    a("s_add_u32 s13, s13, 16")
    mod_loads()
    mod_silu(RG(1))
    mod_rest(RG(0), 0, "m2", True)
    srd(SA, P_WO, 4096 * 1024)
    a("v_lshlrev_b32 v1, 13, v30")
    a("v_lshl_add_u32 v1, v31, 4, v1")
    a("s_lshl_b32 s57, s4, 17")
    a("s_lshl_b32 s10, s7, 8")
    a("s_add_u32 s57, s57, s10")
    def wo_issue(i):
        ks, e = i >> 3, i & 7
        r = RG(ks + 1) + 4 * e
        if not nowo: a(f"buffer_load_dwordx4 v[{r}:{r+3}], v1, {sa}, s57 offen{QPOL}")
        a(f"s_add_u32 s57, s57, {1024 if e < 7 else 1024*25}")
    done = 0
    for i in range(32):
        if i >= DWO: a(f"s_waitcnt vmcnt({DWO-1})")
        wo_issue(i)
        while (done + 1) * 8 <= i + 1 - DWO:
            perms(done); done += 1
    a("s_waitcnt vmcnt(0)")
    while done < 4:
        perms(done); done += 1
    ts(5)
    a("s_cmp_lg_u32 s7, 0")
    a("s_cbranch_scc1 L_noml")
    lds_wait(L_CNT + 4, 4, "mlw")
    a("v_and_b32 v5, 3, v0")
    a("v_lshlrev_b32 v6, 3, v5")
    a(f"ds_read_b64 v[8:9], v6 offset:{L_ML}")
    a(f"s_mov_b32 s59, {LOG2E:#x}")
    a("s_waitcnt lgkmcnt(0)")
    a("v_max_f32_dpp v10, v8, v8 quad_perm:[1,0,3,2] row_mask:0xf bank_mask:0xf")
    a("v_max_f32_dpp v10, v10, v10 quad_perm:[2,3,0,1] row_mask:0xf bank_mask:0xf")
    a("v_sub_f32 v11, v8, v10")
    a("v_mul_f32 v11, s59, v11")
    a("v_exp_f32 v11, v11")
    a("v_mul_f32 v11, v11, v9")
    a("v_add_f32_dpp v11, v11, v11 quad_perm:[1,0,3,2] row_mask:0xf bank_mask:0xf")
    a("v_add_f32_dpp v11, v11, v11 quad_perm:[2,3,0,1] row_mask:0xf bank_mask:0xf")
    a("s_lshl_b32 s10, s2, 7")
    a(f"s_add_u32 s10, s10, {WS_ML}")
    a("v_mov_b32 v16, v10"); a("v_mov_b32 v17, s56"); a("v_mov_b32 v18, v11"); a("v_mov_b32 v19, s56")
    a("s_mov_b64 exec, 1")
    a(f"buffer_store_dwordx4 v[16:19], v4, {sw}, s10 offen sc1")
    a("s_mov_b64 exec, -1")
    a("s_xor_b32 s10, s10, 1024")
    a(f"s_mov_b32 s15, {SPIN}")
    a("L_mlp:")
    a("s_sleep 40")
    a(f"buffer_load_dwordx4 v[20:23], v4, {sw}, s10 offen sc1")
    a("s_waitcnt vmcnt(0)")
    a("v_bitop3_b32 v14, v21, v23, s56 bitop3:0x7e")
    a("v_cmp_eq_u32 vcc, 0, v14")
    a("s_cbranch_vccnz L_mlpok")
    spin_tail(15, "L_mlp")
    a("L_mlpok:")
    a("v_mov_b32 v12, v20"); a("v_mov_b32 v13, v22")
    a("v_max_f32 v14, v10, v12")
    a("v_sub_f32 v10, v10, v14"); a("v_sub_f32 v12, v12, v14"); a("v_sub_f32 v8, v8, v14")
    a("v_mul_f32 v10, s59, v10"); a("v_mul_f32 v12, s59, v12"); a("v_mul_f32 v8, s59, v8")
    a("v_exp_f32 v10, v10"); a("v_exp_f32 v12, v12"); a("v_exp_f32 v8, v8")
    a("v_mul_f32 v10, v10, v11")
    a("v_fmac_f32 v10, v12, v13")
    a("v_rcp_f32 v10, v10")
    a("v_mul_f32 v8, v8, v10")
    a("v_lshlrev_b32 v6, 2, v5")
    a(f"ds_write_b32 v6, v8 offset:{L_F}")
    a("s_waitcnt lgkmcnt(0)")
    a("L_noml:")
    G_OFF, D_OFF, F_OFF = L_STG, L_STG + 65536, L_STG + 98304
    a("s_cmp_eq_u32 s12, 0")
    a("s_cbranch_scc1 L_noffn")
    lds_wait(L_CNT + 4, 4, "kdone")
    a(f"s_sub_u32 s13, s2, {T2_LO}")
    srd(SA, P_WG, 512 * 2752); srd(SB, P_WU, 512 * 2752)
    a("v_lshrrev_b32 v2, 2, v0")
    a("v_mul_u32_u24 v2, 2752, v2")
    a("v_and_b32 v3, 3, v0")
    a("v_lshl_add_u32 v2, v3, 4, v2")
    a("s_lshl_b32 s10, s13, 6")
    a(f"s_mul_i32 s11, s7, {128*2752}")
    a("s_add_u32 s10, s10, s11")
    a("s_lshl_b32 s14, s7, 13")
    a(f"s_add_u32 s14, s14, {G_OFF}")
    for i in range(8):
        for m, s in enumerate((sa, sb_)):
            a(f"s_add_u32 m0, s14, {m*32768 + i*1024}")
            if not noffn: a(f"buffer_load_dwordx4 v2, {s}, s10 offen{WP} lds")
        a(f"s_add_u32 s10, s10, {16*2752}")
        a("s_waitcnt vmcnt(2)")
    srd(SA, P_WD, 1376 * 1024)
    a("v_lshlrev_b32 v2, 10, v30")
    a("v_lshl_add_u32 v2, v31, 4, v2")
    a("s_lshl_b32 s10, s13, 15")
    a("s_lshl_b32 s11, s7, 8")
    a("s_add_u32 s10, s10, s11")
    a(f"s_add_u32 s14, s14, {D_OFF - G_OFF}")
    for i in range(8):
        a(f"s_add_u32 m0, s14, {i*1024}")
        if not noffn: a(f"buffer_load_dwordx4 v2, {sa}, s10 offen{WP} lds")
        a("s_add_u32 s10, s10, 4096")
        a("s_waitcnt vmcnt(3)")
    a("s_waitcnt vmcnt(0)")
    a("v_mov_b32 v4, 0"); a("v_mov_b32 v5, 1")
    a("s_mov_b64 exec, 1")
    a(f"ds_add_u32 v4, v5 offset:{L_CNT+8}")
    a("s_mov_b64 exec, -1")
    a("v_lshlrev_b32 v2, 11, v30")
    a("v_lshl_add_u32 v2, v31, 1, v2")
    a("v_add_u32 v2, s14, v2")
    a(f"s_add_u32 s14, s14, {F_OFF - D_OFF}")
    a("v_lshl_add_u32 v29, v0, 4, s14")
    for i in range(8):
        for e in range(8):
            a(f"ds_read_u16 v{4+e}, v2 offset:{e*256 + i*32}")
        a("s_waitcnt lgkmcnt(0)")
        for t in range(4):
            a(f"v_lshl_or_b32 v{12+t}, v{5+2*t}, 16, v{4+2*t}")
        a(f"ds_write_b128 v29, v[12:15] offset:{i*1024}")
    lds_wait(L_CNT + 8, 4, "gu")
    a("v_bfe_u32 v2, v31, 1, 1")
    a("v_lshlrev_b32 v2, 15, v2")
    a("v_lshl_add_u32 v2, v30, 9, v2")
    a("v_lshrrev_b32 v3, 2, v31")
    a("v_lshl_add_u32 v2, v3, 2, v2")
    a("v_and_b32 v3, 1, v31")
    a("v_lshl_add_u32 v2, v3, 1, v2")
    a("s_lshl_b32 s10, s7, 4")
    a(f"s_add_u32 s10, s10, {G_OFF}")
    a("v_add_u32 v2, s10, v2")
    for ks in range(16):
        for e in range(8):
            a(f"ds_read_u16 v{4+e}, v2 offset:{(ks*32+e)*64}")
        a("s_waitcnt lgkmcnt(0)")
        for t in range(4):
            a(f"v_lshl_or_b32 v{32+ks*4+t}, v{5+2*t}, 16, v{4+2*t}")
    a("L_noffn:")
    ts(6)
    if warm:
        a("s_cmp_lg_u32 s7, 3")
        a("s_cbranch_scc1 L_nowarm2")
        warm_code(4, 0, 4)
        a("L_nowarm2:")
    a("v_and_b32 v2, 7, v31")
    a(f"v_mul_u32_u24 v2, {OR_STRIDE}, v2")
    a("v_lshl_add_u32 v2, v30, 4, v2")
    a("v_lshlrev_b32 v3, 5, v31")
    a("v_lshl_add_u32 v3, v30, 4, v3")
    a("s_lshl_b32 s10, s5, 17")
    a("s_lshl_b32 s11, s4, 12")
    a("s_add_u32 s10, s10, s11")
    a("s_lshl_b32 s11, s6, 11")
    a("s_add_u32 s10, s10, s11")
    a("s_lshl_b32 s11, s7, 9")
    a("s_add_u32 s10, s10, s11")
    a(f"s_add_u32 s10, s10, {WS_Y}")
    a("v_mov_b32 v28, 0xff")
    a("s_waitcnt vmcnt(0)")
    a("s_barrier")
    ts(7)
    for ks in range(4):
        a(f"ds_read_b128 v[{12+4*ks}:{15+4*ks}], v2 offset:{L_OR + ks*64}")
    gemv32()
    for c in range(8):
        a(f"v_add_f32 v{ACC+4*c}, v{ACC+4*c}, v{ACC+4*c+1}")
        a(f"v_add_f32 v{ACC+4*c+2}, v{ACC+4*c+2}, v{ACC+4*c+3}")
        a(f"v_add_f32 v{4+c}, v{ACC+4*c}, v{ACC+4*c+2}")
    for c in range(4): a(f"v_permlane16_swap_b32 v{4+c}, v{8+c}")
    for c in range(4): a(f"v_add_f32 v{4+c}, v{4+c}, v{8+c}")
    for c in range(4): a(f"v_bfi_b32 v{4+c}, v28, s56, v{4+c}")
    a("s_mov_b32 exec_hi, 0")
    a(f"buffer_store_dwordx4 v[4:7], v3, {sw}, s10 offen sc1")
    a("s_mov_b64 exec, -1")
    ts(8)
    a("s_cmp_eq_u32 s12, 0")
    a("s_cbranch_scc1 L_done2")
    DF, HB, MO = 160, 192, 208
    a("v_lshlrev_b32 v2, 5, v0")
    a(f"s_mul_i32 s10, s7, {MG_B}")
    a(f"s_add_u32 s10, s10, {WS_MG + 3*2048}")
    a(f"s_mov_b32 s15, {SPIN}")
    a("L_sbpoll:")
    a(f"buffer_load_dwordx4 v[224:227], v2, {sw}, s10 offen sc1")
    a(f"buffer_load_dwordx4 v[228:231], v2, {sw}, s10 offen offset:16 sc1")
    a(f"buffer_load_dwordx4 v[232:235], v2, {sw}, s10 offen offset:2048 sc1")
    a(f"buffer_load_dwordx4 v[236:239], v2, {sw}, s10 offen offset:2064 sc1")
    a("s_waitcnt vmcnt(0)")
    for i in range(4): a(f"v_bitop3_b32 v{12+i}, v{225+4*i}, v{227+4*i}, s56 bitop3:0x7e")
    a("v_or3_b32 v12, v12, v13, v14")
    a("v_or_b32 v12, v12, v15")
    a("v_cmp_ne_u32 vcc, 0, v12")
    a("s_cbranch_vccz L_sbok")
    spin_tail(15, "L_sbpoll")
    a("L_sbok:")
    for i in range(8):
        a(f"ds_read_b128 v[{DF+4*i}:{DF+4*i+3}], v29 offset:{i*1024}")
    for i in range(16): a(f"v_mov_b32 v{HB+i}, 0")
    a("s_lshl_b32 s10, s7, 11")
    a(f"s_add_u32 s10, s10, {WS_X1}")
    a(f"s_mul_i32 s11, s7, {H2_STRIDE}")
    a("v_lshl_add_u32 v3, v0, 4, s11")
    a("v_and_b32 v24, 3, v31")
    a(f"v_mul_u32_u24 v1, {H2_STRIDE}, v24")
    a("v_lshl_add_u32 v1, v30, 4, v1")
    a("s_lshl_b32 s11, s7, 6")
    a("v_lshl_add_u32 v25, v31, 4, s11")
    a("v_lshl_add_u32 v25, v30, 2, v25")
    a("v_lshlrev_b32 v26, 6, v30")
    a("v_lshl_add_u32 v26, v24, 4, v26")
    a("v_lshlrev_b32 v27, 11, v24")
    a("v_lshrrev_b32 v22, 2, v31")
    a("v_lshl_add_u32 v27, v22, 6, v27")
    a("v_lshl_add_u32 v27, v30, 4, v27")
    a("s_lshl_b32 s14, s13, 13")
    a("s_lshl_b32 s11, s7, 9")
    a("s_add_u32 s14, s14, s11")
    a(f"s_add_u32 s14, s14, {WS_Y2}")
    a("s_waitcnt vmcnt(0)")
    for i in range(8):
        a(f"v_lshlrev_b32 v{MO+2*i}, 16, v{224+2*i}"); a(f"v_and_b32 v{MO+2*i+1}, 0xffff0000, v{224+2*i}")
    K1 = -2.0 * math.sqrt(2.0 / math.pi) * 1.4426950408889634
    a(f"s_mov_b32 s59, {f2u(K1 * 0.044715):#x}")
    a(f"v_mov_b32 v23, {f2u(K1):#x}")
    a(f"s_mov_b32 s15, {SPIN}")
    a("s_waitcnt lgkmcnt(0)")
    a("s_barrier")
    a("L_t2poll:")
    a(f"buffer_load_dwordx4 v[4:7], v2, {sw}, s10 offen sc1")
    a(f"buffer_load_dwordx4 v[8:11], v2, {sw}, s10 offen offset:16 sc1")
    a("s_waitcnt vmcnt(0)")
    for i in range(4): a(f"v_bitop3_b32 v{12+i}, v{4+2*i}, v{5+2*i}, s56 bitop3:0x7e")
    a("v_or3_b32 v12, v12, v13, v14")
    a("v_bitop3_b32 v12, v12, v15, v28 bitop3:0xa8")
    a("v_cmp_ne_u32 vcc, 0, v12")
    a("s_cbranch_vccz L_t2ok")
    a("s_mov_b64 exec, vcc")
    spin_tail(15, "L_t2poll")
    a("L_t2ok:")
    a("s_mov_b64 exec, -1")
    ts(9)
    for i in range(8): a(f"v_and_b32 v{4+i}, 0xffff0000, v{4+i}")
    ln_stats(4, 12, 20, 21, 22)
    a("v_rcp_f32 v21, v21")
    for i in range(8): a(f"v_sub_f32 v{4+i}, v{4+i}, v20")
    rndn(4, 8, 12)
    for i in range(8): a(f"v_mul_f32 v{4+i}, v{4+i}, v21")
    rndn(4, 8, 12)
    for i in range(8): a(f"v_mul_f32 v{4+i}, v{4+i}, v{MO+8+i}")
    rndn(4, 8, 12)
    for i in range(8): a(f"v_add_f32 v{4+i}, v{4+i}, v{MO+i}")
    for i in range(4): a(f"v_cvt_pk_bf16_f32 v{12+i}, v{4+2*i}, v{5+2*i}")
    a(f"ds_write_b128 v3, v[12:15] offset:{L_H2}")
    a("s_waitcnt lgkmcnt(0)")
    a("s_barrier")
    for ks in range(15):
        a(f"ds_read_b128 v[{96+4*ks}:{99+4*ks}], v1 offset:{L_H2 + ks*64}")
    for ks in range(16):
        a(f"s_waitcnt lgkmcnt({14 if ks < 2 else 15-ks})")
        d = 4 + 4 * (ks & 1)
        cc = "0" if ks < 2 else f"v[{d}:{d+3}]"
        a(f"v_mfma_f32_16x16x32_bf16 v[{d}:{d+3}], v[{32+4*ks}:{35+4*ks}], v[{96+4*ks}:{99+4*ks}], {cc}")
        if ks == 0: a(f"ds_read_b128 v[156:159], v1 offset:{L_H2 + 15*64}")
    for i in range(4): a(f"v_add_f32 v{4+i}, v{4+i}, v{8+i}")
    rndn(4, 4, 12)
    for i in range(2): a(f"v_mul_f32 v{8+i}, v{4+i}, v{4+i}")
    for i in range(2): a(f"v_fma_f32 v{8+i}, v{8+i}, s59, v23")
    for i in range(2): a(f"v_mul_f32 v{8+i}, v{8+i}, v{4+i}")
    for i in range(2): a(f"v_exp_f32 v{8+i}, v{8+i}")
    for i in range(2): a(f"v_add_f32 v{8+i}, 1.0, v{8+i}")
    for i in range(2): a(f"v_rcp_f32 v{8+i}, v{8+i}")
    for i in range(2): a(f"v_mul_f32 v{8+i}, v{8+i}, v{4+i}")
    rndn(8, 2, 12)
    a("v_mul_f32 v8, v8, v6"); a("v_mul_f32 v9, v9, v7")
    a("v_cvt_pk_bf16_f32 v12, v8, v9")
    execm(0x000f000f)
    a(f"ds_write_b32 v25, v12 offset:{L_HH}")
    a("s_waitcnt lgkmcnt(0)")
    a("s_barrier")
    for q in range(4):
        if q: execm(0x000F000F << (4 * q))
        a(f"ds_read_b128 v[{HB+4*q}:{HB+4*q+3}], v26 offset:{L_HH}")
    a("s_mov_b64 exec, -1")
    for q in range(4):
        a(f"s_waitcnt lgkmcnt({3-q})")
        for u in range(2):
            d = 4 + 4 * u
            cc = "0" if q == 0 else f"v[{d}:{d+3}]"
            i = 4 * u + q
            a(f"v_mfma_f32_16x16x32_bf16 v[{d}:{d+3}], v[{DF+4*i}:{DF+4*i+3}], v[{HB+4*q}:{HB+4*q+3}], {cc}")
    for i in range(4): a(f"v_bfi_b32 v{4+i}, v28, s56, v{4+i}")
    a(f"buffer_store_dwordx4 v[4:7], v27, {sw}, s14 offen sc1")
    for i in range(4): a(f"v_bfi_b32 v{8+i}, v28, s56, v{8+i}")
    a(f"buffer_store_dwordx4 v[8:11], v27, {sw}, s14 offen offset:256 sc1")
    a("s_add_u32 s10, s13, s7")
    a("s_cmp_lg_u32 s10, 0")
    a("s_cbranch_scc1 L_noepoch")
    a("s_mov_b64 exec, 1")
    a("v_mov_b32 v2, 0"); a("v_mov_b32 v3, s56")
    a(f"buffer_store_dword v3, v2, {sw}, 0 offen sc1")
    a("L_noepoch:")
    ts(10)
    a("L_done2:")
    fin()
    if debug:
        a("L_fin:")
        a("s_mov_b64 exec, 1")
        srd(SW, P_WS, WS_END)
        a("s_lshl_b32 s10, s2, 3")
        a("s_add_u32 s10, s10, s3")
        a("s_lshl_b32 s10, s10, 6")
        a(f"s_add_u32 s10, s10, {WS_TS}")
        a("v_mov_b32 v2, 0")
        for k in range(12):
            a(f"v_mov_b32 v3, s{72+2*k}")
            a(f"buffer_store_dword v3, v2, {sw}, s10 offen offset:{4*k}")
        a("s_getreg_b32 s11, hwreg(HW_REG_XCC_ID)")
        a("v_mov_b32 v3, s11")
        a(f"buffer_store_dword v3, v2, {sw}, s10 offen offset:60")
    a("L_exit:")
    a("s_endpgm")
    body = a.finish()
    txt = HEADER + f"; @launch grid=(256,1,1) block=(512,1,1) lds={L_END}\n"
    txt += f""".amdgcn_target "amdgcn-amd-amdhsa--gfx950"
.text
.globl {KN}
.p2align 8
.type {KN},@function
{KN}:
{body}.section .rodata,"a"
.p2align 6
.amdhsa_kernel {KN}
  .amdhsa_next_free_vgpr 256
  .amdhsa_next_free_sgpr 102
  .amdhsa_accum_offset 256
  .amdhsa_group_segment_fixed_size 0
  .amdhsa_kernarg_size 112
  .amdhsa_user_sgpr_count 2
  .amdhsa_user_sgpr_kernarg_segment_ptr 1
  .amdhsa_system_sgpr_workgroup_id_x 1
  .amdhsa_float_denorm_mode_32 3
.end_amdhsa_kernel
"""
    return txt

if __name__ == "__main__":
    out = sys.argv[1] if len(sys.argv) > 1 else "adaLN_cond__gqa_block_cached__glu_gated_geglu__decode.s"
    kw = {}
    for arg in sys.argv[2:]:
        k, v = arg.split("=")
        kw[k] = v if k.endswith("pol") else int(v)
    open(out, "w").write(gen(**kw))
    print("wrote", out)
```

```python
import sys, math, struct
from asmlib import Asm

KN = "adaLN_cond__gqa_block_cached__glu_gated_geglu__decode_kernel"
HEADER = open("adaLN_cond__gqa_block_cached__glu_gated_geglu__decode.s.ref").read().split("; Override launch")[0]

WS_EPOCH, WS_MG, WS_ML, WS_X1, WS_Y, WS_Y2, WS_TS, WS_END = 0, 0x1000, 0x10000, 0x20000, 0x40000, 0xC0000, 0x180000, 0x200000
MG_B = 12288
L_QP, L_P, L_ML, L_CNT, L_F, L_OR, L_MODP, L_H1, L_H2, L_HH, L_STG, L_END = 0, 2048, 10496, 10560, 10576, 10752, 13056, 17152, 18176, 22528, 32768, 163840
OR_STRIDE, H2_STRIDE = 272, 1040
LOG2E = 0x3fb8aa3b
SCALE = 0x3db504f3
SPIN = 1 << 17
ARRIVE = 256 + 32
T2_LO, T1_LO, MOD_LO = 192, 128, 128

def f2u(x):
    return struct.unpack("<I", struct.pack("<f", x))[0]

def gen(D=8, DW=8, DWO=4, NL=0, debug=False, wpol="nt", qpol="nt", hmap=1, warm=1, nowo=0, nowq=0, noffn=0, prio=0, hold=0):
    a = Asm()
    def ts(k):
        if debug:
            a(f"s_memrealtime s[{72+2*k}:{73+2*k}]")
            a("s_waitcnt lgkmcnt(0)")
    def srd(base, ptr, size):
        a(f"s_mov_b32 s{base}, s{ptr}"); a(f"s_mov_b32 s{base+1}, s{ptr+1}")
        a(f"s_mov_b32 s{base+2}, {size}"); a(f"s_mov_b32 s{base+3}, 0x20000")
    def mask64(s, lo):
        a(f"s_mov_b32 s{s}, {lo:#x}"); a(f"s_mov_b32 s{s+1}, {lo:#x}")
    def execm(lo):
        a(f"s_mov_b32 exec_lo, {lo:#x}"); a(f"s_mov_b32 exec_hi, {lo:#x}")
    def bf16r(v):
        a(f"v_cvt_pk_bf16_f32 v{v}, v{v}, v{v}")
        a(f"v_and_b32 v{v}, 0xffff0000, v{v}")
    def rndn(r, n, t):
        for i in range(n // 2): a(f"v_cvt_pk_bf16_f32 v{t+i}, v{r+2*i}, v{r+2*i+1}")
        for i in range(n // 2):
            a(f"v_lshlrev_b32 v{r+2*i}, 16, v{t+i}"); a(f"v_and_b32 v{r+2*i+1}, 0xffff0000, v{t+i}")
    def allreduce(op, v, t):
        for r in (1, 2, 4, 8):
            a(f"{op}_dpp v{v}, v{v}, v{v} row_ror:{r} row_mask:0xf bank_mask:0xf")
        for sw_ in ("v_permlane16_swap_b32", "v_permlane32_swap_b32"):
            a(f"v_mov_b32 v{t}, v{v}")
            a(f"{sw_} v{t}, v{v}")
            a(f"{op} v{v}, v{v}, v{t}")
    def spin_tail(cnt, label):
        a(f"s_sub_u32 s{cnt}, s{cnt}, 1")
        a(f"s_cmp_lg_u32 s{cnt}, 0")
        a(f"s_cbranch_scc1 {label}")
    def lds_wait(off, val, tag, sleep=4):
        a("v_mov_b32 v4, 0")
        a(f"s_mov_b32 s15, {SPIN}")
        a(f"L_{tag}:")
        a(f"ds_read_b32 v5, v4 offset:{off}")
        a("s_waitcnt lgkmcnt(0)")
        a(f"v_cmp_eq_u32 vcc, {val}, v5")
        a(f"s_cbranch_vccnz L_{tag}ok")
        a(f"s_sleep {sleep}")
        spin_tail(15, f"L_{tag}")
        a(f"L_{tag}ok:")
    def make_tag():
        a("s_add_u32 s10, s56, 1")
        a("s_and_b32 s10, s10, 0xff")
        a("s_mul_i32 s56, s56, 1664525")
        a("s_add_u32 s56, s56, 1013904223")
        a("s_andn2_b32 s56, s56, 0xff")
        a("s_or_b32 s56, s56, s10")
    def fin():
        a("s_branch L_fin" if debug else "s_endpgm")
    def ln_stats(x0, t0, vm, vs, tmp):
        a(f"v_add_f32 v{t0}, v{x0}, v{x0+1}"); a(f"v_add_f32 v{t0+1}, v{x0+2}, v{x0+3}")
        a(f"v_add_f32 v{t0+2}, v{x0+4}, v{x0+5}"); a(f"v_add_f32 v{t0+3}, v{x0+6}, v{x0+7}")
        a(f"v_add_f32 v{t0}, v{t0}, v{t0+1}"); a(f"v_add_f32 v{t0+2}, v{t0+2}, v{t0+3}")
        a(f"v_add_f32 v{vm}, v{t0}, v{t0+2}")
        allreduce("v_add_f32", vm, tmp)
        a(f"v_mul_f32 v{vm}, {f2u(1/512):#x}, v{vm}")
        for i in range(8): a(f"v_sub_f32 v{t0+i}, v{x0+i}, v{vm}")
        a(f"v_mul_f32 v{vs}, v{t0}, v{t0}"); a(f"v_mul_f32 v{tmp}, v{t0+1}, v{t0+1}")
        for i in (2, 4, 6):
            a(f"v_fmac_f32 v{vs}, v{t0+i}, v{t0+i}"); a(f"v_fmac_f32 v{tmp}, v{t0+i+1}, v{t0+i+1}")
        a(f"v_add_f32 v{vs}, v{vs}, v{tmp}")
        allreduce("v_add_f32", vs, tmp)
        bf16r(vm)
        a(f"v_mul_f32 v{vs}, {f2u(1/512):#x}, v{vs}")
        bf16r(vs)
        a(f"v_add_f32 v{vs}, {f2u(1e-5):#x}, v{vs}")
        bf16r(vs)
        a(f"v_sqrt_f32 v{vs}, v{vs}")
        bf16r(vs)
    WP = (" " + wpol) if wpol else ""
    QPOL = (" " + qpol) if qpol else ""
    P_X, P_K, P_V, P_WQ, P_WO, P_WG, P_WU, P_WD, P_C, P_WM, P_OUT, P_DBG, P_WS = 16, 18, 20, 22, 24, 28, 30, 32, 34, 36, 38, 40, 42
    SA, SB, SW = 44, 48, 52
    sa, sb_, sw = "s[44:47]", "s[48:51]", "s[52:55]"

    a("L_entry:")
    a("s_cmp_ge_u32 s2, 256")
    a("s_cbranch_scc1 L_exit")
    a("s_load_dwordx16 s[16:31], s[0:1], 0")
    a("s_load_dwordx8 s[32:39], s[0:1], 64")
    a("s_load_dwordx4 s[40:43], s[0:1], 96")
    if debug:
        for k in range(12): a(f"s_mov_b32 s{72+2*k}, 0")
    if hold: a("s_memrealtime s[96:97]")
    a("v_lshrrev_b32 v1, 6, v0")
    a("v_and_b32 v0, 63, v0")
    a("v_readfirstlane_b32 s3, v1")
    a("s_and_b32 s8, s2, 7")
    a("s_lshr_b32 s9, s2, 3")
    a("s_lshr_b32 s4, s9, 3")
    if hmap == 0:
        a("s_lshl_b32 s4, s4, 3")
        a("s_add_u32 s4, s4, s8")
    else:
        a("s_lshl_b32 s10, s8, 2")
        a("s_add_u32 s4, s4, s10")
    a("s_bfe_u32 s5, s9, 0x20001")
    a("s_and_b32 s6, s9, 1")
    a("v_lshrrev_b32 v30, 4, v0")
    a("v_and_b32 v31, 15, v0")
    a("s_cmp_ge_u32 s3, 4")
    a("s_cbranch_scc1 L_service")

    a("v_lshrrev_b32 v3, 2, v31")
    a("v_and_b32 v4, 3, v31")
    a("v_lshlrev_b32 v1, 8, v3")
    a("v_lshl_add_u32 v1, v4, 4, v1")
    a("v_lshl_add_u32 v1, v30, 6, v1")
    a("v_lshlrev_b32 v2, 4, v0")
    a("s_lshl_b32 s57, s5, 5")
    a("s_add_u32 s57, s57, s4")
    a("s_lshl_b32 s57, s57, 20")
    a("s_lshl_b32 s10, s6, 19")
    a("s_add_u32 s57, s57, s10")
    a("s_lshl_b32 s10, s3, 12")
    a("s_add_u32 s57, s57, s10")
    a("s_mov_b32 s58, s57")
    a("s_waitcnt lgkmcnt(0)")
    ts(0)
    srd(SA, P_K, 128 << 20); srd(SB, P_V, 128 << 20)
    NSLOT = 48
    PRE = NSLOT - 4
    def in_lds(q): return PRE <= q < PRE + NL
    regq = [q for q in range(128) if not in_lds(q)]
    rslot = {q: i % NSLOT for i, q in enumerate(regq)}
    vbase = (rslot[regq[-1]] + 1) % NSLOT
    def slot(q):
        return 64 + 4 * (rslot[q] if q < 128 else (vbase + (q - 128) % D) % NSLOT)
    def issue(q, wait=True):
        if wait: a(f"s_waitcnt vmcnt({D-1})")
        r = q & 3
        off = f" offset:{r*1024}" if r else ""
        if in_lds(q):
            if r == 0:
                a(f"s_add_u32 m0, s14, {(q-PRE)*1024}")
            a(f"buffer_load_dwordx4 v1, {sa}, s57 offen{off} nt lds")
            if r == 3: a("s_add_u32 s57, s57, 16384")
            return
        s = slot(q)
        if q < 128:
            a(f"buffer_load_dwordx4 v[{s}:{s+3}], v1, {sa}, s57 offen{off} nt")
            if r == 3: a("s_add_u32 s57, s57, 16384")
        else:
            a(f"buffer_load_dwordx4 v[{s}:{s+3}], v2, {sb_}, s58 offen{off} nt")
            if r == 3: a("s_add_u32 s58, s58, 16384")
    for q in range(D): issue(q, wait=False)
    a("s_load_dword s56, s[42:43], 0")
    for j in range(4): mask64(60 + 2 * j, (0x000F000F << (4 * j)))
    mask64(68, 0xAAAAAAAA); mask64(70, 0xCCCCCCCC)
    a("s_lshl_b32 s14, s3, 15")
    a(f"s_add_u32 s14, s14, {L_STG}")
    a("v_add_u32 v59, s14, v2")
    a("v_lshlrev_b32 v29, 5, v4")
    a("v_lshl_add_u32 v29, v30, 7, v29")
    a("s_lshl_b32 s10, s3, 11")
    a(f"s_add_u32 s10, s10, {L_P}")
    a("v_lshlrev_b32 v28, 6, v4")
    a("v_lshl_add_u32 v28, v30, 4, v28")
    a("v_lshl_add_u32 v28, v3, 2, v28")
    a("v_add_u32 v56, s10, v28")
    a("v_lshl_add_u32 v3, v30, 4, s10")
    a("v_and_b32 v8, 1, v31")
    a("v_cmp_eq_u32 vcc, 1, v8")
    a("v_mov_b32 v9, 0xffff")
    a("v_mov_b32 v10, 0xffff0000")
    a("v_cndmask_b32 v9, v9, v10, vcc")
    a("v_bfe_u32 v8, v31, 1, 2")
    for w in range(4):
        a(f"v_cmp_eq_u32 vcc, {w}, v8")
        a(f"v_cndmask_b32 v{4+w}, 0, v9, vcc")
    a("v_mov_b32 v57, 0xff800000")
    a("s_waitcnt lgkmcnt(0)")
    make_tag()
    a("s_barrier")
    for q in range(D, PRE + NL): issue(q)
    ts(1)
    a("s_barrier")
    ts(2)
    for w in range(4):
        d = 32 + 8 * w if w < 3 else 8
        a(f"ds_read_b128 v[{d}:{d+3}], v29 offset:{L_QP + w*512}")
        a(f"ds_read_b128 v[{d+4}:{d+7}], v29 offset:{L_QP + w*512 + 16}")
    issue(PRE + NL)
    a("s_waitcnt lgkmcnt(0)")
    for i in range(8):
        a(f"v_add_f32 v{32+i}, v{32+i}, v{40+i}")
        a(f"v_add_f32 v{8+i}, v{8+i}, v{48+i}")
    for i in range(8):
        a(f"v_add_f32 v{8+i}, v{8+i}, v{32+i}")
    for i in range(4):
        a(f"v_cvt_pk_bf16_f32 v{24+i}, v{8+2*i}, v{9+2*i}")
    for j in range(4):
        for i in range(4):
            a(f"v_cndmask_b32 v{32+4*j+i}, 0, v{24+i}, s[{60+2*j}:{61+2*j}]")
    a(f"s_mov_b32 s59, {SCALE:#x}")
    LT = 64 + 4 * 24
    def consume(q):
        t, j = q >> 2, q & 3
        acc = 8 + 4 * (t & 3)
        if in_lds(q):
            if j == 0:
                for jj in range(4):
                    a(f"ds_read_b128 v[{LT+4*jj}:{LT+4*jj+3}], v59 offset:{(q-PRE+jj)*1024}")
            a(f"s_waitcnt lgkmcnt({3-j})")
            s = LT + 4 * j
        else:
            s = slot(q)
        c = "0" if j == 0 else f"v[{acc}:{acc+3}]"
        a(f"v_mfma_f32_16x16x32_bf16 v[{acc}:{acc+3}], v[{s}:{s+3}], v[{32+4*j}:{35+4*j}], {c}")
        if (q & 15) == 15:
            u = q >> 4
            for i in range(4):
                a(f"v_mov_b32_dpp v{24+i}, v{8+4*i} quad_perm:[0,0,0,0] row_mask:0xf bank_mask:0xf")
            for r in (1, 2, 3):
                for i in range(4):
                    a(f"v_add_f32_dpp v{24+i}, v{8+4*i+r}, v{24+i} quad_perm:[{r},{r},{r},{r}] row_mask:0xf bank_mask:0xf")
            a("v_cndmask_b32 v24, v24, v25, s[68:69]")
            a("v_cndmask_b32 v26, v26, v27, s[68:69]")
            a("v_cndmask_b32 v24, v24, v26, s[70:71]")
            bf16r(24)
            a("v_mul_f32 v24, s59, v24")
            a("v_cvt_pk_bf16_f32 v24, v24, v24")
            a(f"v_and_b32 v{48+u}, 0xffff0000, v24")
            a(f"v_max_f32 v57, v57, v{48+u}")
    issued, consumed = PRE + NL + 1, 0
    live = {slot(q): q for q in range(issued) if not in_lds(q)}
    while consumed < 128:
        landed = issued - D
        n = 0
        while consumed < min(landed, 128) and n < 12:
            if in_lds(consumed):
                if (consumed | 3) >= landed: break
                for jj in range(4): assert live.get(LT + 4 * jj, -1) < consumed, "LDS staging slot busy"
            consume(consumed); consumed += 1; n += 1
        if issued < 128 + D:
            assert live.get(slot(issued), -1) < consumed, "ring slot busy"
            if consumed < PRE + NL: assert not (LT <= slot(issued) < LT + 16)
            live[slot(issued)] = issued
            issue(issued); issued += 1
    ts(3)
    allreduce("v_max_f32", 57, 24)
    a(f"s_mov_b32 s59, {LOG2E:#x}")
    a("v_mul_f32 v25, s59, v57")
    for u in range(8):
        a(f"v_fma_f32 v{48+u}, v{48+u}, s59, -v25")
    for u in range(8):
        a(f"v_exp_f32 v{48+u}, v{48+u}")
    for u in range(8):
        a(f"v_cvt_pk_bf16_f32 v{8+u}, v{48+u}, v{48+u}")
        a(f"ds_write_b32 v56, v{8+u} offset:{u*256}")
    a("ds_read_b128 v[12:15], v3")
    a("ds_read_b128 v[16:19], v3 offset:64")
    a("v_add_f32 v48, v48, v49"); a("v_add_f32 v50, v50, v51"); a("v_add_f32 v52, v52, v53"); a("v_add_f32 v54, v54, v55")
    a("v_add_f32 v48, v48, v50"); a("v_add_f32 v52, v52, v54"); a("v_add_f32 v58, v48, v52")
    allreduce("v_add_f32", 58, 24)
    a("v_mov_b32 v26, v57"); a("v_mov_b32 v27, v58")
    a("s_lshl_b32 s10, s3, 3")
    a("v_mov_b32 v24, s10")
    a("v_mov_b32 v25, 1")
    a(f"ds_write_b64 v24, v[26:27] offset:{L_ML}")
    a("v_mov_b32 v24, 0")
    a("s_mov_b64 exec, 1")
    a(f"ds_add_u32 v24, v25 offset:{L_CNT+4}")
    a("s_mov_b64 exec, -1")
    a("s_waitcnt lgkmcnt(0)")
    for j in range(4):
        for w in range(4):
            a(f"v_and_b32 v{32+4*j+w}, v{12+j}, v{4+w}")
    for i in range(4): a(f"v_mov_b32 v{8+i}, 0")
    a("v_add_u32 v3, 128, v3")
    ts(4)
    def vstep(v, rel, load, waitn, build):
        t, j = v >> 2, v & 3
        ab, ob = 32 + 16 * (t & 1), 32 + 16 * ((t + 1) & 1)
        ppn, ppf = 12 + 4 * ((t + 1) & 1), 12 + 4 * (t & 1)
        s = slot(128 + v)
        if j == 0 and build:
            a("s_waitcnt lgkmcnt(0)")
            a(f"ds_read_b128 v[{ppf}:{ppf+3}], v3 offset:{rel*64}")
        a(f"s_waitcnt vmcnt({waitn})")
        a(f"v_mfma_f32_16x16x32_bf16 v[8:11], v[{ab+4*j}:{ab+4*j+3}], v[{s}:{s+3}], v[8:11]")
        if load: issue(128 + v + D, wait=False)
        if build:
            for w in range(4):
                a(f"v_and_b32 v{ob+4*j+w}, v{ppn+j}, v{4+w}")
    UL = D * 8 // math.gcd(D, 8)
    nit = (128 - D) // UL
    a(f"s_mov_b32 s11, {nit}")
    a("L_vloop:")
    for v in range(UL): vstep(v, v >> 2, True, D - 1, True)
    a(f"v_add_u32 v3, {UL//4*64}, v3")
    spin_tail(11, "L_vloop")
    base = nit * UL
    a("s_lshl_b32 s10, s3, 2")
    a("v_mov_b32 v24, s10")
    a(f"s_mov_b32 s11, {SPIN}")
    a("L_fwait:")
    a(f"ds_read_b32 v25, v24 offset:{L_F}")
    a("s_waitcnt lgkmcnt(0)")
    a("v_cmp_ne_u32 vcc, -1, v25")
    a("s_cbranch_vccnz L_fok")
    a("s_sleep 2")
    spin_tail(11, "L_fwait")
    a("L_fok:")
    a("v_and_b32 v26, 1, v30")
    a("v_lshlrev_b32 v26, 3, v26")
    a("v_lshl_add_u32 v26, v31, 4, v26")
    a(f"s_mul_i32 s10, s3, {OR_STRIDE}")
    a("v_add_u32 v26, s10, v26")
    for v in range(base, 128):
        ld = v + D < 128
        vstep(v, (v - base) >> 2, ld, D - 1 if ld else 127 - v, v < 124)
    ts(5)
    for i in range(4): a(f"v_mul_f32 v{8+i}, v{8+i}, v25")
    a("v_cvt_pk_bf16_f32 v12, v8, v9")
    a("v_cvt_pk_bf16_f32 v13, v10, v11")
    a(f"ds_write_b64 v26, v[12:13] offset:{L_OR}")
    a("v_lshlrev_b32 v14, 16, v12"); a("v_and_b32 v15, 0xffff0000, v12")
    a("v_lshlrev_b32 v16, 16, v13"); a("v_and_b32 v17, 0xffff0000, v13")
    for i in range(4): a(f"v_sub_f32 v{8+i}, v{8+i}, v{14+i}")
    a("v_cvt_pk_bf16_f32 v18, v8, v9")
    a("v_cvt_pk_bf16_f32 v19, v10, v11")
    a(f"ds_write_b64 v26, v[18:19] offset:{L_OR + 4*OR_STRIDE}")
    a("s_waitcnt lgkmcnt(0)")
    a("s_barrier")
    a("s_cmp_lg_u32 s3, 0")
    a("s_cbranch_scc1 L_done")
    a(f"s_cmp_lt_u32 s2, {T1_LO}")
    a("s_cbranch_scc1 L_done")
    srd(SW, P_WS, WS_END)
    srd(SA, P_X, 4096)
    srd(SB, P_OUT, 4096)
    a("s_bfe_u32 s12, s2, 0x20005")
    a("s_and_b32 s13, s2, 31")
    a("v_lshrrev_b32 v29, 2, v0")
    a("v_lshlrev_b32 v1, 11, v29")
    a("v_and_b32 v2, 3, v0")
    a("v_lshl_add_u32 v1, v2, 4, v1")
    a("s_lshl_b32 s10, s12, 17")
    a("s_lshl_b32 s11, s13, 6")
    a("s_add_u32 s10, s10, s11")
    a(f"s_add_u32 s60, s10, {WS_Y}")
    for u in (1, 2, 3): a(f"s_add_u32 s{60+u}, s60, {u*32768}")
    a("v_lshrrev_b32 v3, 1, v30")
    a("v_and_b32 v4, 1, v30")
    a("v_lshl_add_u32 v5, v2, 1, v4")
    a("v_lshl_add_u32 v4, v5, 1, v3")
    a("v_lshlrev_b32 v5, 3, v5")
    a("v_lshlrev_b32 v41, 4, v3")
    a("v_lshlrev_b32 v3, 1, v4")
    a("v_lshlrev_b32 v4, 2, v4")
    a(f"s_mul_i32 s10, s12, {MG_B}")
    a("s_add_u32 s10, s10, s11")
    a(f"s_add_u32 s10, s10, {WS_MG + 2*2048}")
    a(f"s_add_u32 s66, s10, {3*2048}")
    a("s_lshl_b32 s14, s12, 10")
    a("s_lshl_b32 s67, s13, 5")
    a("s_add_u32 s14, s14, s67")
    a(f"buffer_load_ushort v7, v3, {sa}, s14 offen")
    a(f"buffer_load_dwordx2 v[42:43], v5, {sw}, s10 offen sc1")
    a(f"buffer_load_dwordx2 v[44:45], v5, {sw}, s66 offen sc1")
    a("v_mov_b32 v40, 0xff")
    def gather_poll(tag, nload, offs):
        a(f"s_mov_b32 s15, {SPIN}")
        a(f"L_{tag}poll:")
        for u in range(nload):
            a(f"buffer_load_dwordx4 v[{8+4*u}:{11+4*u}], v{offs[u]}, {sw}, s{60+u} offen sc1")
        a("s_waitcnt vmcnt(0)")
        for i in range(2 * nload):
            a(f"v_bitop3_b32 v{32+i}, v{8+2*i}, v{9+2*i}, s56 bitop3:0x7e")
        if nload == 4:
            a("v_or3_b32 v32, v32, v33, v34"); a("v_or3_b32 v35, v35, v36, v37"); a("v_or3_b32 v32, v32, v38, v39")
        else:
            a("v_or_b32 v36, v36, v37"); a("v_or3_b32 v32, v32, v33, v34")
            a("v_cndmask_b32 v36, 0, v36, s[64:65]")
            a("v_or_b32 v35, v35, v36")
        a("v_bitop3_b32 v32, v32, v35, v40 bitop3:0xa8")
        a("v_cmp_ne_u32 vcc, 0, v32")
        a(f"s_cbranch_vccz L_{tag}ok")
        a("s_mov_b64 exec, vcc")
        spin_tail(15, f"L_{tag}poll")
        a(f"L_{tag}ok:")
        a("s_mov_b64 exec, -1")
    def gather_sum(nload):
        for i in range(4):
            a(f"v_add_f32 v{8+i}, v{8+i}, v{12+i}")
            if nload == 4: a(f"v_add_f32 v{16+i}, v{16+i}, v{20+i}")
        for i in range(4): a(f"v_add_f32 v{8+i}, v{8+i}, v{16+i}")
        a("v_permlane32_swap_b32 v8, v9")
        a("v_permlane32_swap_b32 v10, v11")
        a("v_add_f32 v8, v8, v9")
        a("v_add_f32 v10, v10, v11")
        a("v_permlane16_swap_b32 v8, v10")
        a("v_add_f32 v8, v8, v10")
        a("v_add_f32_dpp v8, v8, v8 row_ror:4 row_mask:0xf bank_mask:0xf")
        a("v_add_f32_dpp v8, v8, v8 row_ror:8 row_mask:0xf bank_mask:0xf")
    gather_poll("t1", 4, [1, 1, 1, 1])
    a(f"s_mov_b32 s15, {SPIN}")
    a("L_gchk:")
    a("v_bitop3_b32 v32, v43, v45, s56 bitop3:0x7e")
    a("v_cmp_ne_u32 vcc, 0, v32")
    a("s_cbranch_vccz L_gok")
    a(f"buffer_load_dwordx2 v[42:43], v5, {sw}, s10 offen sc1")
    a(f"buffer_load_dwordx2 v[44:45], v5, {sw}, s66 offen sc1")
    a("s_waitcnt vmcnt(0)")
    spin_tail(15, "L_gchk")
    a("L_gok:")
    ts(6)
    a(f"s_sub_u32 s10, s2, {T2_LO}")
    a("s_cmp_ge_u32 s10, 43")
    a("s_cbranch_scc1 L_t1nobar")
    a("s_barrier")
    a("L_t1nobar:")
    a("v_lshrrev_b32 v6, v41, v42")
    a("v_lshlrev_b32 v6, 16, v6")
    a("v_lshlrev_b32 v7, 16, v7")
    gather_sum(4)
    bf16r(8)
    a("v_mul_f32 v8, v8, v6")
    bf16r(8)
    a("v_add_f32 v7, v8, v7")
    bf16r(7)
    a("s_lshl_b32 s10, s12, 11")
    a("s_add_u32 s10, s10, s11")
    a(f"s_add_u32 s60, s10, {WS_X1}")
    a("v_and_or_b32 v9, s56, v40, v7")
    execm(0x000f000f)
    a(f"buffer_store_dword v9, v4, {sw}, s60 offen sc1")
    a("s_mov_b64 exec, -1")
    ts(7)
    a("v_lshlrev_b32 v1, 13, v29")
    a("v_lshl_add_u32 v1, v2, 4, v1")
    a("v_cmp_gt_u32 vcc, 11, v29")
    a("v_mov_b32 v5, 0x7ffffff0")
    a("v_cndmask_b32 v5, v5, v1, vcc")
    a("s_mov_b64 s[64:65], vcc")
    a(f"s_add_u32 s60, s10, {WS_Y2}")
    a(f"s_add_u32 s61, s60, {16*8192}")
    a(f"s_add_u32 s62, s60, {32*8192}")
    a("v_lshrrev_b32 v28, v41, v44")
    a("v_lshlrev_b32 v28, 16, v28")
    a(f"s_sub_u32 s10, s2, {T2_LO}")
    a("s_cmp_ge_u32 s10, 43")
    a("s_cbranch_scc1 L_t3nobar")
    a("s_barrier")
    a("s_barrier")
    a("L_t3nobar:")
    gather_poll("t3", 3, [1, 1, 5])
    ts(8)
    gather_sum(3)
    bf16r(8)
    a("v_mul_f32 v8, v8, v28")
    bf16r(8)
    a("v_add_f32 v8, v8, v7")
    a("v_cvt_pk_bf16_f32 v8, v8, v8")
    execm(0x000f000f)
    a(f"buffer_store_short v8, v3, {sb_}, s14 offen")
    ts(9)
    if hold:
        a("s_cmp_lg_u32 s2, 128")
        a("s_cbranch_scc1 L_done")
        a("L_hold:")
        a("s_memrealtime s[98:99]")
        a("s_waitcnt lgkmcnt(0)")
        a("s_sub_u32 s98, s98, s96")
        a(f"s_cmp_lt_u32 s98, {hold*100}")
        a("s_cbranch_scc1 L_hold")
    if debug == 2:
        a("s_mov_b64 exec, 1")
        a("s_not_b32 s72, s72")
        a("v_mov_b32 v2, 0")
        for k in range(10):
            a(f"v_mov_b32 v3, s{72+2*k}")
            a(f"global_atomic_umax v2, v3, s[40:41] offset:{4*k}")
        a("s_not_b32 s82, s82")
        a("v_mov_b32 v3, s82")
        a("global_atomic_umax v2, v3, s[40:41] offset:40")
    a("L_done:")
    fin()

    RG = lambda i: 96 + 32 * i
    ACC = RG(4)
    def mod_loads():
        srd(SA, P_C, 4096)
        a("v_and_b32 v2, 3, v31")
        a("v_lshlrev_b32 v2, 10, v2")
        a("v_lshrrev_b32 v3, 2, v31")
        a("v_lshl_add_u32 v2, v3, 6, v2")
        a("v_lshl_add_u32 v2, v30, 4, v2")
        a("s_lshl_b32 s10, s7, 8")
        a(f"buffer_load_dwordx4 v[16:19], v2, {sa}, s10 offen")
        srd(SA, P_WM, 512 * 6144)
        a("v_mul_u32_u24 v2, 49152, v30")
        a("v_lshl_add_u32 v2, v31, 3, v2")
        a(f"s_mul_i32 s10, s7, {128*6144}")
        a("s_lshl_b32 s11, s13, 7")
        a("s_add_u32 s10, s10, s11")
        for ks in range(4):
            for e in range(8):
                r = 32 + ks * 16 + 2 * e
                a(f"buffer_load_dwordx2 v[{r}:{r+1}], v2, {sa}, s10 offen{WP}")
                a(f"s_add_u32 s10, s10, {6144 if e < 7 else 6144*25}")
    def mod_silu(T):
        a("s_waitcnt vmcnt(32)")
        hi, lo = -1.4426950216293335, -1.925963033500011e-08
        a(f"s_mov_b32 s59, {f2u(hi):#x}")
        a(f"s_mov_b32 s58, {f2u(lo):#x}")
        X, E, L_, R = T, T + 8, T + 16, T + 24
        for i in range(4):
            a(f"v_lshlrev_b32 v{X+2*i}, 16, v{16+i}"); a(f"v_and_b32 v{X+2*i+1}, 0xffff0000, v{16+i}")
        for i in range(8): a(f"v_mul_f32 v{E+i}, s59, v{X+i}")
        for i in range(8): a(f"v_fma_f32 v{L_+i}, v{X+i}, s59, -v{E+i}")
        for i in range(8): a(f"v_fmac_f32 v{L_+i}, s58, v{X+i}")
        for i in range(8): a(f"v_exp_f32 v{E+i}, v{E+i}")
        for i in range(8): a(f"v_mul_f32 v{L_+i}, {f2u(math.log(2.0)):#x}, v{L_+i}")
        for i in range(8): a(f"v_min_f32 v{E+i}, {f2u(1e37):#x}, v{E+i}")
        for i in range(8): a(f"v_fmac_f32 v{E+i}, v{E+i}, v{L_+i}")
        for i in range(8): a(f"v_add_f32 v{E+i}, 1.0, v{E+i}")
        for i in range(8): a(f"v_rcp_f32 v{R+i}, v{E+i}")
        for i in range(8): a(f"v_mul_f32 v{L_+i}, v{X+i}, v{R+i}")
        for i in range(8): a(f"v_fma_f32 v{E+i}, -v{L_+i}, v{E+i}, v{X+i}")
        for i in range(8): a(f"v_fmac_f32 v{L_+i}, v{E+i}, v{R+i}")
        for i in range(4): a(f"v_cvt_pk_bf16_f32 v{4+i}, v{L_+2*i}, v{L_+2*i+1}")
        for q in (1, 2, 3):
            for i in range(4):
                a(f"v_mov_b32_dpp v{4+4*q+i}, v{4+i} row_shl:{4*q} row_mask:0xf bank_mask:0xf")
    def mod_rest(T, extra, tag, arrive):
        for ks in range(4):
            a(f"s_waitcnt vmcnt({extra + 8*(3-ks)})")
            for c in range(4):
                for t in range(4):
                    r = 32 + ks * 16
                    a(f"v_perm_b32 v{T+c*4+t}, v{r+2*(2*t+1)+(c>>1)}, v{r+2*(2*t)+(c>>1)}, s{62+(c&1)}")
            for c in range(4):
                d = T + 16 + 4 * c
                cc = "0" if ks == 0 else f"v[{d}:{d+3}]"
                a(f"v_mfma_f32_16x16x32_bf16 v[{d}:{d+3}], v[{4+4*ks}:{7+4*ks}], v[{T+c*4}:{T+c*4+3}], {cc}")
        a("s_lshl_b32 s10, s7, 10")
        a("v_lshl_add_u32 v25, v31, 6, s10")
        a("s_mov_b64 exec, 0xffff")
        for c in range(4):
            a(f"ds_write_b128 v25, v[{T+16+4*c}:{T+19+4*c}] offset:{L_MODP+16*c}")
        a("s_mov_b64 exec, 1")
        a("v_mov_b32 v26, 0"); a("v_mov_b32 v27, 1")
        a(f"ds_add_rtn_u32 v26, v26, v27 offset:{L_CNT}")
        a("s_mov_b64 exec, -1")
        a("v_lshlrev_b32 v25, 6, v31")
        a("v_lshl_add_u32 v25, v30, 2, v25")
        a(f"v_add_u32 v25, {L_MODP}, v25")
        a("v_add_u32 v24, 2048, v25")
        a("s_waitcnt lgkmcnt(0)")
        a("v_readfirstlane_b32 s10, v26")
        a("s_cmp_lg_u32 s10, 3")
        a(f"s_cbranch_scc1 L_{tag}end")
        for c in range(4):
            a(f"ds_read2st64_b32 v[{4+2*c}:{5+2*c}], v25 offset0:0 offset1:4")
            a(f"ds_read2st64_b32 v[{12+2*c}:{13+2*c}], v24 offset0:0 offset1:4")
            if c < 3:
                a("v_add_u32 v25, 16, v25"); a("v_add_u32 v24, 16, v24")
        a(f"v_mul_u32_u24 v2, {MG_B}, v30")
        a("v_lshl_add_u32 v2, v31, 4, v2")
        a("s_lshl_b32 s10, s13, 8")
        a(f"s_add_u32 s10, s10, {WS_MG}")
        a("s_lshr_b32 s11, s13, 3")
        a("s_waitcnt lgkmcnt(0)")
        for c in range(4):
            a(f"v_add_f32 v{4+2*c}, v{4+2*c}, v{5+2*c}"); a(f"v_add_f32 v{12+2*c}, v{12+2*c}, v{13+2*c}")
        for c in range(4): a(f"v_add_f32 v{20+c}, v{4+2*c}, v{12+2*c}")
        a("s_cmp_eq_u32 s11, 1")
        a(f"s_cbranch_scc1 L_{tag}one")
        a("s_cmp_lg_u32 s11, 4")
        a(f"s_cbranch_scc1 L_{tag}st")
        a(f"L_{tag}one:")
        rndn(20, 4, 4)
        for c in range(4): a(f"v_add_f32 v{20+c}, 1.0, v{20+c}")
        a(f"L_{tag}st:")
        a("v_cvt_pk_bf16_f32 v4, v20, v21"); a("v_mov_b32 v5, s56")
        a("v_cvt_pk_bf16_f32 v6, v22, v23"); a("v_mov_b32 v7, s56")
        a(f"buffer_store_dwordx4 v[4:7], v2, {sw}, s10 offen sc1")
        if not arrive: ts(1)
        a(f"L_{tag}end:")
    def warm_code(v, n0, n1):
        a("s_getpc_b64 s[10:11]")
        lab = a.label("L_pc")
        a(f"{lab}:")
        a(f"s_sub_u32 s10, s10, {lab}-L_entry")
        a("s_subb_u32 s11, s11, 0")
        a(f"v_lshlrev_b32 v{v}, 7, v0")
        if n0: a(f"v_add_u32 v{v}, {n0*8192}, v{v}")
        for i in range(n0, n1):
            a(f"v_cmp_gt_u32 vcc, L_exit-L_entry, v{v}")
            a("s_and_saveexec_b64 s[64:65], vcc")
            skip = a.label("L_wsk")
            a(f"s_cbranch_execz {skip}")
            a(f"global_load_dword v{v+1}, v{v}, s[10:11]")
            a(f"{skip}:")
            a("s_mov_b64 exec, s[64:65]")
            a(f"v_add_u32 v{v}, 8192, v{v}")

    a("L_service:")
    if prio: a(f"s_setprio {prio}")
    a("s_sub_u32 s7, s3, 4")
    a("s_mov_b32 s62, 0x05040100"); a("s_mov_b32 s63, 0x07060302")
    a("s_mov_b32 s12, 0")
    a("s_cmp_ge_u32 s2, 64")
    a("s_cbranch_scc1 L_norole")
    a("s_cmp_lt_u32 s8, 2")
    a("s_cselect_b32 s12, 1, 0")
    a("L_norole:")
    a("v_lshlrev_b32 v1, 16, v30")
    a("v_lshl_add_u32 v1, v31, 4, v1")
    a("v_mov_b32 v4, 0"); a("v_mov_b32 v5, 0"); a("v_mov_b32 v6, 0"); a("v_mov_b32 v7, 0")
    a("v_mov_b32 v8, -1"); a("v_mov_b32 v9, -1"); a("v_mov_b32 v10, -1"); a("v_mov_b32 v11, -1")
    a(f"ds_write_b128 v4, v[4:7] offset:{L_CNT}")
    a(f"ds_write_b128 v4, v[8:11] offset:{L_F}")
    a("s_waitcnt lgkmcnt(0)")
    ts(0)
    a("s_load_dword s56, s[42:43], 0")
    srd(SW, P_WS, WS_END)
    a("s_cmp_eq_u32 s12, 0")
    a("s_cbranch_scc1 L_noprod1")
    a("s_lshl_b32 s13, s8, 3")
    a("s_add_u32 s13, s13, s9")
    mod_loads()
    mod_silu(RG(1))
    a("s_waitcnt vmcnt(8)")
    a("L_noprod1:")
    srd(SA, P_WQ, 512 * 8192)
    a("s_lshl_b32 s57, s7, 20")
    a("s_lshl_b32 s10, s4, 8")
    a("s_add_u32 s57, s57, s10")
    def wq_issue(i):
        ks, e = i >> 3, i & 7
        r = RG(ks + 1) + 4 * e
        if not nowq: a(f"buffer_load_dwordx4 v[{r}:{r+3}], v1, {sa}, s57 offen{QPOL}")
        a(f"s_add_u32 s57, s57, {8192 if e < 7 else 8192*25}")
    for i in range(DW): wq_issue(i)
    a("s_waitcnt lgkmcnt(0)")
    a("s_barrier")
    make_tag()
    a("s_cmp_eq_u32 s12, 0")
    a("s_cbranch_scc1 L_m1end")
    mod_rest(RG(0), 0 if nowq else DW, "m1", False)
    srd(SB, P_X, 4096)
    a("v_lshlrev_b32 v2, 4, v0")
    a("s_lshl_b32 s10, s5, 10")
    a(f"buffer_load_dwordx4 v[32:35], v2, {sb_}, s10 offen")
    a("v_lshlrev_b32 v2, 2, v0")
    a("s_lshl_b32 s11, s7, 8")
    a("s_add_u32 s10, s10, s11")
    a(f"buffer_load_dword v36, v2, {sb_}, s10 offen")
    if warm:
        a("s_cmp_lg_u32 s7, 3")
        a("s_cbranch_scc1 L_nowarm1")
        warm_code(60, 0, 4)
        a("L_nowarm1:")
    def perms(ks):
        for c in range(8):
            for t in range(4):
                a(f"v_perm_b32 v{RG(ks)+c*4+t}, v{RG(ks+1)+4*(2*t+1)+(c>>1)}, v{RG(ks+1)+4*(2*t)+(c>>1)}, s{62+(c&1)}")
    done = 0
    for i in range(DW, 32):
        a(f"s_waitcnt vmcnt({DW-1})")
        wq_issue(i)
        while (done + 1) * 8 <= i + 1 - DW:
            perms(done); done += 1
    a("v_lshlrev_b32 v2, 3, v0")
    a(f"s_mul_i32 s10, s5, {MG_B}")
    a("s_lshl_b32 s11, s7, 9")
    a("s_add_u32 s10, s10, s11")
    a(f"s_add_u32 s10, s10, {WS_MG}")
    a(f"buffer_load_dwordx2 v[4:5], v2, {sw}, s10 offen sc1")
    a(f"buffer_load_dwordx2 v[6:7], v2, {sw}, s10 offen offset:2048 sc1")
    a(f"s_waitcnt vmcnt({2 if nowq else min(32-DW, DW)+2})")
    for i in range(4):
        a(f"v_lshlrev_b32 v{40+2*i}, 16, v{32+i}"); a(f"v_and_b32 v{41+2*i}, 0xffff0000, v{32+i}")
    ln_stats(40, 48, 56, 57, 58)
    a("v_rcp_f32 v57, v57")
    a("v_lshlrev_b32 v38, 16, v36"); a("v_and_b32 v39, 0xffff0000, v36")
    a("v_sub_f32 v38, v38, v56"); a("v_sub_f32 v39, v39, v56")
    rndn(38, 2, 58)
    a("v_mul_f32 v38, v38, v57"); a("v_mul_f32 v39, v39, v57")
    rndn(38, 2, 58)
    a("s_lshl_b32 s11, s7, 8")
    a(f"s_add_u32 s11, s11, {L_H1}")
    a("v_lshl_add_u32 v28, v0, 2, s11")
    a("v_lshl_add_u32 v29, v30, 4, s11")
    while done < 4:
        a(f"s_waitcnt vmcnt({2 + 8*(3-done)})")
        perms(done); done += 1
    a(f"s_mov_b32 s15, {SPIN}")
    ts(2)
    a("s_branch L_hchk")
    a("L_hpoll:")
    a(f"buffer_load_dwordx2 v[4:5], v2, {sw}, s10 offen sc1")
    a(f"buffer_load_dwordx2 v[6:7], v2, {sw}, s10 offen offset:2048 sc1")
    a("L_hchk:")
    a("s_waitcnt vmcnt(0)")
    a("v_xor_b32 v8, s56, v5"); a("v_xor_b32 v9, s56, v7")
    a("v_or_b32 v8, v8, v9")
    a("v_cmp_ne_u32 vcc, 0, v8")
    a("s_cbranch_vccz L_hok")
    spin_tail(15, "L_hpoll")
    a("L_hok:")
    ts(3)
    a("v_lshlrev_b32 v8, 16, v6"); a("v_and_b32 v9, 0xffff0000, v6")
    a("v_mul_f32 v8, v8, v38"); a("v_mul_f32 v9, v9, v39")
    a("v_lshlrev_b32 v10, 16, v4"); a("v_and_b32 v11, 0xffff0000, v4")
    rndn(8, 2, 12)
    a("v_add_f32 v8, v8, v10"); a("v_add_f32 v9, v9, v11")
    a("v_cvt_pk_bf16_f32 v8, v8, v9")
    a("ds_write_b32 v28, v8")
    for ks in range(4):
        a(f"ds_read_b128 v[{12+4*ks}:{15+4*ks}], v29 offset:{ks*64}")
    def gemv32():
        for ks in range(4):
            a(f"s_waitcnt lgkmcnt({3-ks})")
            for c in range(8):
                cc = "0" if ks == 0 else f"v[{ACC+4*c}:{ACC+4*c+3}]"
                a(f"v_mfma_f32_16x16x32_bf16 v[{ACC+4*c}:{ACC+4*c+3}], v[{12+4*ks}:{15+4*ks}], v[{RG(ks)+4*c}:{RG(ks)+4*c+3}], {cc}")
    a("s_lshl_b32 s10, s7, 9")
    a("v_lshl_add_u32 v2, v31, 5, s10")
    gemv32()
    for c in range(0, 8, 2):
        a(f"ds_write2_b32 v2, v{ACC+4*c}, v{ACC+4*c+4} offset0:{c} offset1:{c+1}")
    a("s_waitcnt lgkmcnt(0)")
    ts(4)
    a("s_barrier")
    a(f"s_sub_u32 s12, s2, {T2_LO}")
    a("s_cmp_lt_u32 s12, 43")
    a("s_cselect_b32 s12, 1, 0")
    a(f"s_sub_u32 s13, s2, {MOD_LO}")
    a("s_cmp_ge_u32 s13, 32")
    a("s_cbranch_scc1 L_m2end")
    a("s_add_u32 s13, s13, 16")
    mod_loads()
    mod_silu(RG(1))
    mod_rest(RG(0), 0, "m2", True)
    srd(SA, P_WO, 4096 * 1024)
    a("v_lshlrev_b32 v1, 13, v30")
    a("v_lshl_add_u32 v1, v31, 4, v1")
    a("s_lshl_b32 s57, s4, 17")
    a("s_lshl_b32 s10, s7, 8")
    a("s_add_u32 s57, s57, s10")
    def wo_issue(i):
        ks, e = i >> 3, i & 7
        r = RG(ks + 1) + 4 * e
        if not nowo: a(f"buffer_load_dwordx4 v[{r}:{r+3}], v1, {sa}, s57 offen{QPOL}")
        a(f"s_add_u32 s57, s57, {1024 if e < 7 else 1024*25}")
    done = 0
    for i in range(32):
        if i >= DWO: a(f"s_waitcnt vmcnt({DWO-1})")
        wo_issue(i)
        while (done + 1) * 8 <= i + 1 - DWO:
            perms(done); done += 1
    a("s_waitcnt vmcnt(0)")
    while done < 4:
        perms(done); done += 1
    ts(5)
    a("s_cmp_lg_u32 s7, 0")
    a("s_cbranch_scc1 L_noml")
    lds_wait(L_CNT + 4, 4, "mlw")
    a("v_and_b32 v5, 3, v0")
    a("v_lshlrev_b32 v6, 3, v5")
    a(f"ds_read_b64 v[8:9], v6 offset:{L_ML}")
    a(f"s_mov_b32 s59, {LOG2E:#x}")
    a("s_waitcnt lgkmcnt(0)")
    a("v_max_f32_dpp v10, v8, v8 quad_perm:[1,0,3,2] row_mask:0xf bank_mask:0xf")
    a("v_max_f32_dpp v10, v10, v10 quad_perm:[2,3,0,1] row_mask:0xf bank_mask:0xf")
    a("v_sub_f32 v11, v8, v10")
    a("v_mul_f32 v11, s59, v11")
    a("v_exp_f32 v11, v11")
    a("v_mul_f32 v11, v11, v9")
    a("v_add_f32_dpp v11, v11, v11 quad_perm:[1,0,3,2] row_mask:0xf bank_mask:0xf")
    a("v_add_f32_dpp v11, v11, v11 quad_perm:[2,3,0,1] row_mask:0xf bank_mask:0xf")
    a("s_lshl_b32 s10, s2, 7")
    a(f"s_add_u32 s10, s10, {WS_ML}")
    a("v_mov_b32 v16, v10"); a("v_mov_b32 v17, s56"); a("v_mov_b32 v18, v11"); a("v_mov_b32 v19, s56")
    a("s_mov_b64 exec, 1")
    a(f"buffer_store_dwordx4 v[16:19], v4, {sw}, s10 offen sc1")
    a("s_mov_b64 exec, -1")
    a("s_xor_b32 s10, s10, 1024")
    a(f"s_mov_b32 s15, {SPIN}")
    a("L_mlp:")
    a("s_sleep 40")
    a(f"buffer_load_dwordx4 v[20:23], v4, {sw}, s10 offen sc1")
    a("s_waitcnt vmcnt(0)")
    a("v_bitop3_b32 v14, v21, v23, s56 bitop3:0x7e")
    a("v_cmp_eq_u32 vcc, 0, v14")
    a("s_cbranch_vccnz L_mlpok")
    spin_tail(15, "L_mlp")
    a("L_mlpok:")
    a("v_mov_b32 v12, v20"); a("v_mov_b32 v13, v22")
    a("v_max_f32 v14, v10, v12")
    a("v_sub_f32 v10, v10, v14"); a("v_sub_f32 v12, v12, v14"); a("v_sub_f32 v8, v8, v14")
    a("v_mul_f32 v10, s59, v10"); a("v_mul_f32 v12, s59, v12"); a("v_mul_f32 v8, s59, v8")
    a("v_exp_f32 v10, v10"); a("v_exp_f32 v12, v12"); a("v_exp_f32 v8, v8")
    a("v_mul_f32 v10, v10, v11")
    a("v_fmac_f32 v10, v12, v13")
    a("v_rcp_f32 v10, v10")
    a("v_mul_f32 v8, v8, v10")
    a("v_lshlrev_b32 v6, 2, v5")
    a(f"ds_write_b32 v6, v8 offset:{L_F}")
    a("s_waitcnt lgkmcnt(0)")
    a("L_noml:")
    G_OFF, D_OFF, F_OFF = L_STG, L_STG + 65536, L_STG + 98304
    a("s_cmp_eq_u32 s12, 0")
    a("s_cbranch_scc1 L_noffn")
    lds_wait(L_CNT + 4, 4, "kdone")
    a(f"s_sub_u32 s13, s2, {T2_LO}")
    srd(SA, P_WG, 512 * 2752); srd(SB, P_WU, 512 * 2752)
    a("v_lshrrev_b32 v2, 2, v0")
    a("v_mul_u32_u24 v2, 2752, v2")
    a("v_and_b32 v3, 3, v0")
    a("v_lshl_add_u32 v2, v3, 4, v2")
    a("s_lshl_b32 s10, s13, 6")
    a(f"s_mul_i32 s11, s7, {128*2752}")
    a("s_add_u32 s10, s10, s11")
    a("s_lshl_b32 s14, s7, 13")
    a(f"s_add_u32 s14, s14, {G_OFF}")
    for i in range(8):
        for m, s in enumerate((sa, sb_)):
            a(f"s_add_u32 m0, s14, {m*32768 + i*1024}")
            if not noffn: a(f"buffer_load_dwordx4 v2, {s}, s10 offen{WP} lds")
        a(f"s_add_u32 s10, s10, {16*2752}")
        a("s_waitcnt vmcnt(2)")
    srd(SA, P_WD, 1376 * 1024)
    a("v_lshlrev_b32 v2, 10, v30")
    a("v_lshl_add_u32 v2, v31, 4, v2")
    a("s_lshl_b32 s10, s13, 15")
    a("s_lshl_b32 s11, s7, 8")
    a("s_add_u32 s10, s10, s11")
    a(f"s_add_u32 s14, s14, {D_OFF - G_OFF}")
    for i in range(8):
        a(f"s_add_u32 m0, s14, {i*1024}")
        if not noffn: a(f"buffer_load_dwordx4 v2, {sa}, s10 offen{WP} lds")
        a("s_add_u32 s10, s10, 4096")
        a("s_waitcnt vmcnt(3)")
    a("s_waitcnt vmcnt(0)")
    a("v_mov_b32 v4, 0"); a("v_mov_b32 v5, 1")
    a("s_mov_b64 exec, 1")
    a(f"ds_add_u32 v4, v5 offset:{L_CNT+8}")
    a("s_mov_b64 exec, -1")
    a("v_lshlrev_b32 v2, 11, v30")
    a("v_lshl_add_u32 v2, v31, 1, v2")
    a("v_add_u32 v2, s14, v2")
    a(f"s_add_u32 s14, s14, {F_OFF - D_OFF}")
    a("v_lshl_add_u32 v29, v0, 4, s14")
    for i in range(8):
        for e in range(8):
            a(f"ds_read_u16 v{4+e}, v2 offset:{e*256 + i*32}")
        a("s_waitcnt lgkmcnt(0)")
        for t in range(4):
            a(f"v_lshl_or_b32 v{12+t}, v{5+2*t}, 16, v{4+2*t}")
        a(f"ds_write_b128 v29, v[12:15] offset:{i*1024}")
    lds_wait(L_CNT + 8, 4, "gu")
    a("v_bfe_u32 v2, v31, 1, 1")
    a("v_lshlrev_b32 v2, 15, v2")
    a("v_lshl_add_u32 v2, v30, 9, v2")
    a("v_lshrrev_b32 v3, 2, v31")
    a("v_lshl_add_u32 v2, v3, 2, v2")
    a("v_and_b32 v3, 1, v31")
    a("v_lshl_add_u32 v2, v3, 1, v2")
    a("s_lshl_b32 s10, s7, 4")
    a(f"s_add_u32 s10, s10, {G_OFF}")
    a("v_add_u32 v2, s10, v2")
    for ks in range(16):
        for e in range(8):
            a(f"ds_read_u16 v{4+e}, v2 offset:{(ks*32+e)*64}")
        a("s_waitcnt lgkmcnt(0)")
        for t in range(4):
            a(f"v_lshl_or_b32 v{32+ks*4+t}, v{5+2*t}, 16, v{4+2*t}")
    a("L_noffn:")
    ts(6)
    if warm:
        a("s_cmp_lg_u32 s7, 3")
        a("s_cbranch_scc1 L_nowarm2")
        warm_code(4, 0, 4)
        a("L_nowarm2:")
    a("v_and_b32 v2, 7, v31")
    a(f"v_mul_u32_u24 v2, {OR_STRIDE}, v2")
    a("v_lshl_add_u32 v2, v30, 4, v2")
    a("v_lshlrev_b32 v3, 5, v31")
    a("v_lshl_add_u32 v3, v30, 4, v3")
    a("s_lshl_b32 s10, s5, 17")
    a("s_lshl_b32 s11, s4, 12")
    a("s_add_u32 s10, s10, s11")
    a("s_lshl_b32 s11, s6, 11")
    a("s_add_u32 s10, s10, s11")
    a("s_lshl_b32 s11, s7, 9")
    a("s_add_u32 s10, s10, s11")
    a(f"s_add_u32 s10, s10, {WS_Y}")
    a("v_mov_b32 v28, 0xff")
    a("s_waitcnt vmcnt(0)")
    a("s_barrier")
    ts(7)
    for ks in range(4):
        a(f"ds_read_b128 v[{12+4*ks}:{15+4*ks}], v2 offset:{L_OR + ks*64}")
    gemv32()
    for c in range(8):
        a(f"v_add_f32 v{ACC+4*c}, v{ACC+4*c}, v{ACC+4*c+1}")
        a(f"v_add_f32 v{ACC+4*c+2}, v{ACC+4*c+2}, v{ACC+4*c+3}")
        a(f"v_add_f32 v{4+c}, v{ACC+4*c}, v{ACC+4*c+2}")
    for c in range(4): a(f"v_permlane16_swap_b32 v{4+c}, v{8+c}")
    for c in range(4): a(f"v_add_f32 v{4+c}, v{4+c}, v{8+c}")
    for c in range(4): a(f"v_bfi_b32 v{4+c}, v28, s56, v{4+c}")
    a("s_mov_b32 exec_hi, 0")
    a(f"buffer_store_dwordx4 v[4:7], v3, {sw}, s10 offen sc1")
    a("s_mov_b64 exec, -1")
    ts(8)
    a("s_cmp_eq_u32 s12, 0")
    a("s_cbranch_scc1 L_done2")
    DF, HB, MO = 160, 192, 208
    a("v_lshlrev_b32 v2, 5, v0")
    a(f"s_mul_i32 s10, s7, {MG_B}")
    a(f"s_add_u32 s10, s10, {WS_MG + 3*2048}")
    a(f"s_mov_b32 s15, {SPIN}")
    a("L_sbpoll:")
    a(f"buffer_load_dwordx4 v[224:227], v2, {sw}, s10 offen sc1")
    a(f"buffer_load_dwordx4 v[228:231], v2, {sw}, s10 offen offset:16 sc1")
    a(f"buffer_load_dwordx4 v[232:235], v2, {sw}, s10 offen offset:2048 sc1")
    a(f"buffer_load_dwordx4 v[236:239], v2, {sw}, s10 offen offset:2064 sc1")
    a("s_waitcnt vmcnt(0)")
    for i in range(4): a(f"v_bitop3_b32 v{12+i}, v{225+4*i}, v{227+4*i}, s56 bitop3:0x7e")
    a("v_or3_b32 v12, v12, v13, v14")
    a("v_or_b32 v12, v12, v15")
    a("v_cmp_ne_u32 vcc, 0, v12")
    a("s_cbranch_vccz L_sbok")
    spin_tail(15, "L_sbpoll")
    a("L_sbok:")
    for i in range(8):
        a(f"ds_read_b128 v[{DF+4*i}:{DF+4*i+3}], v29 offset:{i*1024}")
    for i in range(16): a(f"v_mov_b32 v{HB+i}, 0")
    a("s_lshl_b32 s10, s7, 11")
    a(f"s_add_u32 s10, s10, {WS_X1}")
    a(f"s_mul_i32 s11, s7, {H2_STRIDE}")
    a("v_lshl_add_u32 v3, v0, 4, s11")
    a("v_and_b32 v24, 3, v31")
    a(f"v_mul_u32_u24 v1, {H2_STRIDE}, v24")
    a("v_lshl_add_u32 v1, v30, 4, v1")
    a("s_lshl_b32 s11, s7, 6")
    a("v_lshl_add_u32 v25, v31, 4, s11")
    a("v_lshl_add_u32 v25, v30, 2, v25")
    a("v_lshlrev_b32 v26, 6, v30")
    a("v_lshl_add_u32 v26, v24, 4, v26")
    a("v_lshlrev_b32 v27, 11, v24")
    a("v_lshrrev_b32 v22, 2, v31")
    a("v_lshl_add_u32 v27, v22, 6, v27")
    a("v_lshl_add_u32 v27, v30, 4, v27")
    a("s_lshl_b32 s14, s13, 13")
    a("s_lshl_b32 s11, s7, 9")
    a("s_add_u32 s14, s14, s11")
    a(f"s_add_u32 s14, s14, {WS_Y2}")
    a("s_waitcnt vmcnt(0)")
    for i in range(8):
        a(f"v_lshlrev_b32 v{MO+2*i}, 16, v{224+2*i}"); a(f"v_and_b32 v{MO+2*i+1}, 0xffff0000, v{224+2*i}")
    K1 = -2.0 * math.sqrt(2.0 / math.pi) * 1.4426950408889634
    a(f"s_mov_b32 s59, {f2u(K1 * 0.044715):#x}")
    a(f"v_mov_b32 v23, {f2u(K1):#x}")
    a(f"s_mov_b32 s15, {SPIN}")
    a("s_waitcnt lgkmcnt(0)")
    a("s_barrier")
    a("L_t2poll:")
    a(f"buffer_load_dwordx4 v[4:7], v2, {sw}, s10 offen sc1")
    a(f"buffer_load_dwordx4 v[8:11], v2, {sw}, s10 offen offset:16 sc1")
    a("s_waitcnt vmcnt(0)")
    for i in range(4): a(f"v_bitop3_b32 v{12+i}, v{4+2*i}, v{5+2*i}, s56 bitop3:0x7e")
    a("v_or3_b32 v12, v12, v13, v14")
    a("v_bitop3_b32 v12, v12, v15, v28 bitop3:0xa8")
    a("v_cmp_ne_u32 vcc, 0, v12")
    a("s_cbranch_vccz L_t2ok")
    a("s_mov_b64 exec, vcc")
    spin_tail(15, "L_t2poll")
    a("L_t2ok:")
    a("s_mov_b64 exec, -1")
    ts(9)
    for i in range(8): a(f"v_and_b32 v{4+i}, 0xffff0000, v{4+i}")
    ln_stats(4, 12, 20, 21, 22)
    a("v_rcp_f32 v21, v21")
    for i in range(8): a(f"v_sub_f32 v{4+i}, v{4+i}, v20")
    rndn(4, 8, 12)
    for i in range(8): a(f"v_mul_f32 v{4+i}, v{4+i}, v21")
    rndn(4, 8, 12)
    for i in range(8): a(f"v_mul_f32 v{4+i}, v{4+i}, v{MO+8+i}")
    rndn(4, 8, 12)
    for i in range(8): a(f"v_add_f32 v{4+i}, v{4+i}, v{MO+i}")
    for i in range(4): a(f"v_cvt_pk_bf16_f32 v{12+i}, v{4+2*i}, v{5+2*i}")
    a(f"ds_write_b128 v3, v[12:15] offset:{L_H2}")
    a("s_waitcnt lgkmcnt(0)")
    a("s_barrier")
    for ks in range(15):
        a(f"ds_read_b128 v[{96+4*ks}:{99+4*ks}], v1 offset:{L_H2 + ks*64}")
    for ks in range(16):
        a(f"s_waitcnt lgkmcnt({14 if ks < 2 else 15-ks})")
        d = 4 + 4 * (ks & 1)
        cc = "0" if ks < 2 else f"v[{d}:{d+3}]"
        a(f"v_mfma_f32_16x16x32_bf16 v[{d}:{d+3}], v[{32+4*ks}:{35+4*ks}], v[{96+4*ks}:{99+4*ks}], {cc}")
        if ks == 0: a(f"ds_read_b128 v[156:159], v1 offset:{L_H2 + 15*64}")
    for i in range(4): a(f"v_add_f32 v{4+i}, v{4+i}, v{8+i}")
    rndn(4, 4, 12)
    for i in range(2): a(f"v_mul_f32 v{8+i}, v{4+i}, v{4+i}")
    for i in range(2): a(f"v_fma_f32 v{8+i}, v{8+i}, s59, v23")
    for i in range(2): a(f"v_mul_f32 v{8+i}, v{8+i}, v{4+i}")
    for i in range(2): a(f"v_exp_f32 v{8+i}, v{8+i}")
    for i in range(2): a(f"v_add_f32 v{8+i}, 1.0, v{8+i}")
    for i in range(2): a(f"v_rcp_f32 v{8+i}, v{8+i}")
    for i in range(2): a(f"v_mul_f32 v{8+i}, v{8+i}, v{4+i}")
    rndn(8, 2, 12)
    a("v_mul_f32 v8, v8, v6"); a("v_mul_f32 v9, v9, v7")
    a("v_cvt_pk_bf16_f32 v12, v8, v9")
    execm(0x000f000f)
    a(f"ds_write_b32 v25, v12 offset:{L_HH}")
    a("s_waitcnt lgkmcnt(0)")
    a("s_barrier")
    for q in range(4):
        if q: execm(0x000F000F << (4 * q))
        a(f"ds_read_b128 v[{HB+4*q}:{HB+4*q+3}], v26 offset:{L_HH}")
    a("s_mov_b64 exec, -1")
    for q in range(4):
        a(f"s_waitcnt lgkmcnt({3-q})")
        for u in range(2):
            d = 4 + 4 * u
            cc = "0" if q == 0 else f"v[{d}:{d+3}]"
            i = 4 * u + q
            a(f"v_mfma_f32_16x16x32_bf16 v[{d}:{d+3}], v[{DF+4*i}:{DF+4*i+3}], v[{HB+4*q}:{HB+4*q+3}], {cc}")
    for i in range(4): a(f"v_bfi_b32 v{4+i}, v28, s56, v{4+i}")
    a(f"buffer_store_dwordx4 v[4:7], v27, {sw}, s14 offen sc1")
    for i in range(4): a(f"v_bfi_b32 v{8+i}, v28, s56, v{8+i}")
    a(f"buffer_store_dwordx4 v[8:11], v27, {sw}, s14 offen offset:256 sc1")
    a("s_add_u32 s10, s13, s7")
    a("s_cmp_lg_u32 s10, 0")
    a("s_cbranch_scc1 L_noepoch")
    a("s_mov_b64 exec, 1")
    a("v_mov_b32 v2, 0"); a("v_mov_b32 v3, s56")
    a(f"buffer_store_dword v3, v2, {sw}, 0 offen sc1")
    a("L_noepoch:")
    ts(10)
    a("L_done2:")
    fin()
    if debug:
        a("L_fin:")
        a("s_mov_b64 exec, 1")
        srd(SW, P_WS, WS_END)
        a("s_lshl_b32 s10, s2, 3")
        a("s_add_u32 s10, s10, s3")
        a("s_lshl_b32 s10, s10, 6")
        a(f"s_add_u32 s10, s10, {WS_TS}")
        a("v_mov_b32 v2, 0")
        for k in range(12):
            a(f"v_mov_b32 v3, s{72+2*k}")
            a(f"buffer_store_dword v3, v2, {sw}, s10 offen offset:{4*k}")
        a("s_getreg_b32 s11, hwreg(HW_REG_XCC_ID)")
        a("v_mov_b32 v3, s11")
        a(f"buffer_store_dword v3, v2, {sw}, s10 offen offset:60")
    a("L_exit:")
    a("s_endpgm")
    body = a.finish()
    txt = HEADER + f"; @launch grid=(256,1,1) block=(512,1,1) lds={L_END}\n"
    txt += f""".amdgcn_target "amdgcn-amd-amdhsa--gfx950"
.text
.globl {KN}
.p2align 8
.type {KN},@function
{KN}:
{body}.section .rodata,"a"
.p2align 6
.amdhsa_kernel {KN}
  .amdhsa_next_free_vgpr 256
  .amdhsa_next_free_sgpr 102
  .amdhsa_accum_offset 256
  .amdhsa_group_segment_fixed_size 0
  .amdhsa_kernarg_size 112
  .amdhsa_user_sgpr_count 2
  .amdhsa_user_sgpr_kernarg_segment_ptr 1
  .amdhsa_system_sgpr_workgroup_id_x 1
  .amdhsa_float_denorm_mode_32 3
.end_amdhsa_kernel
"""
    return txt

if __name__ == "__main__":
    out = sys.argv[1] if len(sys.argv) > 1 else "adaLN_cond__gqa_block_cached__glu_gated_geglu__decode.s"
    kw = {}
    for arg in sys.argv[2:]:
        k, v = arg.split("=")
        kw[k] = v if k.endswith("pol") else int(v)
    open(out, "w").write(gen(**kw))
    print("wrote", out)
```

```python
import sys, math
from asmlib import Asm

KN = "adaLN_cond__gqa_block_cached__glu_gated_geglu__decode_kernel"
HEADER = open("adaLN_cond__gqa_block_cached__glu_gated_geglu__decode.s.ref").read().split("; Override launch")[0]

WS_EPOCH, WS_HG, WS_MOD, WS_ML, WS_X1, WS_HH, WS_Y, WS_TS, WS_END = 0, 0x1000, 0x4000, 0x10000, 0x20000, 0x24000, 0x40000, 0x100000, 0x200000
L_QP, L_P, L_ML, L_CNT, L_F, L_ST, L_OR, L_MODP, L_H2, L_T3, L_STG, L_END = 0, 2048, 10496, 10560, 10576, 10592, 10752, 13056, 15104, 19456, 32768, 98304
OR_STRIDE, H2_STRIDE = 272, 1040
LOG2E = 0x3fb8aa3b
SCALE = 0x3db504f3
SPIN = 1 << 17
ARRIVE = 256 + 64

def f2u(x):
    import struct
    return struct.unpack("<I", struct.pack("<f", x))[0]

def gen(D=8, DW=8, debug=False, wpol="", warm=True, hold=0):
    a = Asm()
    nts = [0]
    def ts(k):
        if debug:
            a(f"s_memrealtime s[{72+2*k}:{73+2*k}]")
            a("s_waitcnt lgkmcnt(0)")
    def srd(base, ptr, size):
        a(f"s_mov_b32 s{base}, s{ptr}"); a(f"s_mov_b32 s{base+1}, s{ptr+1}")
        a(f"s_mov_b32 s{base+2}, {size}"); a(f"s_mov_b32 s{base+3}, 0x20000")
    def mask64(s, lo, hi=None):
        a(f"s_mov_b32 s{s}, {lo:#x}"); a(f"s_mov_b32 s{s+1}, {(lo if hi is None else hi):#x}")
    def bf16r(v):
        a(f"v_cvt_pk_bf16_f32 v{v}, v{v}, v{v}")
        a(f"v_and_b32 v{v}, 0xffff0000, v{v}")
    def allreduce(op, v, t):
        for r in (1, 2, 4, 8):
            a(f"{op}_dpp v{v}, v{v}, v{v} row_ror:{r} row_mask:0xf bank_mask:0xf")
        for sw in ("v_permlane16_swap_b32", "v_permlane32_swap_b32"):
            a(f"v_mov_b32 v{t}, v{v}")
            a(f"{sw} v{t}, v{v}")
            a(f"{op} v{v}, v{v}, v{t}")
    def fin():
        a("s_branch L_fin" if debug else "s_endpgm")
    WP = (" " + wpol) if wpol else ""
    P_X, P_K, P_V, P_WQ, P_WO, P_WG, P_WU, P_WD, P_C, P_WM, P_OUT, P_DBG, P_WS = 16, 18, 20, 22, 24, 28, 30, 32, 34, 36, 38, 40, 42
    SA, SB, SW = 44, 48, 52
    sa, sb_, sw = "s[44:47]", "s[48:51]", "s[52:55]"

    a("s_cmp_ge_u32 s2, 256")
    a("s_cbranch_scc1 L_exit")
    a("s_load_dwordx16 s[16:31], s[0:1], 0")
    a("s_load_dwordx8 s[32:39], s[0:1], 64")
    a("s_load_dwordx4 s[40:43], s[0:1], 96")
    if debug:
        for k in range(12): a(f"s_mov_b32 s{72+2*k}, 0")
    if hold: a("s_memrealtime s[96:97]")
    a("v_lshrrev_b32 v1, 6, v0")
    a("v_and_b32 v0, 63, v0")
    a("v_readfirstlane_b32 s3, v1")
    a("s_and_b32 s8, s2, 7")
    a("s_lshr_b32 s9, s2, 3")
    a("s_lshr_b32 s4, s9, 3")
    a("s_lshl_b32 s4, s4, 3")
    a("s_add_u32 s4, s4, s8")
    a("s_bfe_u32 s5, s9, 0x20001")
    a("s_and_b32 s6, s9, 1")
    a("v_lshrrev_b32 v30, 4, v0")
    a("v_and_b32 v31, 15, v0")
    a("s_cmp_ge_u32 s3, 4")
    a("s_cbranch_scc1 L_service")

    a("v_lshrrev_b32 v3, 2, v31")
    a("v_and_b32 v4, 3, v31")
    a("v_lshlrev_b32 v1, 8, v3")
    a("v_lshl_add_u32 v1, v4, 4, v1")
    a("v_lshl_add_u32 v1, v30, 6, v1")
    a("v_lshlrev_b32 v2, 4, v0")
    a("s_lshl_b32 s57, s5, 5")
    a("s_add_u32 s57, s57, s4")
    a("s_lshl_b32 s57, s57, 20")
    a("s_lshl_b32 s10, s6, 19")
    a("s_add_u32 s57, s57, s10")
    a("s_lshl_b32 s10, s3, 12")
    a("s_add_u32 s57, s57, s10")
    a("s_mov_b32 s58, s57")
    a("s_waitcnt lgkmcnt(0)")
    ts(0)
    srd(SA, P_K, 128 << 20); srd(SB, P_V, 128 << 20)
    NSLOT = 48
    def slot(q):
        return 64 + 4 * ((q % NSLOT) if q < 128 else 32 + (q - 128) % D)
    def issue(q, wait=True):
        if wait: a(f"s_waitcnt vmcnt({D-1})")
        r = q & 3
        off = f" offset:{r*1024}" if r else ""
        s = slot(q)
        if q < 128:
            a(f"buffer_load_dwordx4 v[{s}:{s+3}], v1, {sa}, s57 offen{off} nt")
            if r == 3: a("s_add_u32 s57, s57, 16384")
        else:
            a(f"buffer_load_dwordx4 v[{s}:{s+3}], v2, {sb_}, s58 offen{off} nt")
            if r == 3: a("s_add_u32 s58, s58, 16384")
    for q in range(D): issue(q, wait=False)
    for j in range(4): mask64(60 + 2 * j, (0x000F000F << (4 * j)))
    mask64(68, 0xAAAAAAAA); mask64(70, 0xCCCCCCCC)
    a("v_lshlrev_b32 v29, 5, v4")
    a("v_lshl_add_u32 v29, v30, 7, v29")
    a("s_lshl_b32 s10, s3, 11")
    a(f"s_add_u32 s10, s10, {L_P}")
    a("v_lshlrev_b32 v28, 6, v4")
    a("v_lshl_add_u32 v28, v30, 4, v28")
    a("v_lshl_add_u32 v28, v3, 2, v28")
    a("v_add_u32 v56, s10, v28")
    a("v_lshl_add_u32 v3, v30, 4, s10")
    a("v_and_b32 v8, 1, v31")
    a("v_cmp_eq_u32 vcc, 1, v8")
    a("v_mov_b32 v9, 0xffff")
    a("v_mov_b32 v10, 0xffff0000")
    a("v_cndmask_b32 v9, v9, v10, vcc")
    a("v_bfe_u32 v8, v31, 1, 2")
    for w in range(4):
        a(f"v_cmp_eq_u32 vcc, {w}, v8")
        a(f"v_cndmask_b32 v{4+w}, 0, v9, vcc")
    a("v_mov_b32 v57, 0xff800000")
    a("s_barrier")
    PRE = NSLOT - 4
    for q in range(D, PRE): issue(q)
    ts(1)
    a("s_barrier")
    ts(2)
    for w in range(4):
        a(f"ds_read_b128 v[{32+8*w}:{35+8*w}], v29 offset:{L_QP + w*512}") if w < 3 else a(f"ds_read_b128 v[8:11], v29 offset:{L_QP + w*512}")
        a(f"ds_read_b128 v[{36+8*w}:{39+8*w}], v29 offset:{L_QP + w*512 + 16}") if w < 3 else a(f"ds_read_b128 v[12:15], v29 offset:{L_QP + w*512 + 16}")
    issue(PRE)
    a("s_waitcnt lgkmcnt(0)")
    for i in range(8):
        a(f"v_add_f32 v{32+i}, v{32+i}, v{40+i}")
        a(f"v_add_f32 v{8+i}, v{8+i}, v{48+i}")
    for i in range(8):
        a(f"v_add_f32 v{8+i}, v{8+i}, v{32+i}")
    for i in range(4):
        a(f"v_cvt_pk_bf16_f32 v{24+i}, v{8+2*i}, v{9+2*i}")
    for j in range(4):
        for i in range(4):
            a(f"v_cndmask_b32 v{32+4*j+i}, 0, v{24+i}, s[{60+2*j}:{61+2*j}]")
    a(f"s_mov_b32 s59, {SCALE:#x}")
    def consume(q):
        t, j = q >> 2, q & 3
        acc = 8 + 4 * (t & 3)
        s = slot(q)
        c = "0" if j == 0 else f"v[{acc}:{acc+3}]"
        a(f"v_mfma_f32_16x16x32_bf16 v[{acc}:{acc+3}], v[{s}:{s+3}], v[{32+4*j}:{35+4*j}], {c}")
        if (q & 15) == 15:
            u = q >> 4
            for i in range(4):
                a(f"v_mov_b32_dpp v{24+i}, v{8+4*i} quad_perm:[0,0,0,0] row_mask:0xf bank_mask:0xf")
            for r in (1, 2, 3):
                for i in range(4):
                    a(f"v_add_f32_dpp v{24+i}, v{8+4*i+r}, v{24+i} quad_perm:[{r},{r},{r},{r}] row_mask:0xf bank_mask:0xf")
            a("v_cndmask_b32 v24, v24, v25, s[68:69]")
            a("v_cndmask_b32 v26, v26, v27, s[68:69]")
            a("v_cndmask_b32 v24, v24, v26, s[70:71]")
            bf16r(24)
            a("v_mul_f32 v24, s59, v24")
            a(f"v_cvt_pk_bf16_f32 v24, v24, v24")
            a(f"v_and_b32 v{48+u}, 0xffff0000, v24")
            a(f"v_max_f32 v57, v57, v{48+u}")
    issued, consumed = PRE + 1, 0
    while consumed < 128:
        landed = issued - D
        n = 0
        while consumed < min(landed, 128) and n < 12:
            consume(consumed); consumed += 1; n += 1
        if issued < 128 + D:
            assert issued >= 128 or consumed > issued - NSLOT
            issue(issued); issued += 1
    ts(3)
    allreduce("v_max_f32", 57, 24)
    a(f"s_mov_b32 s59, {LOG2E:#x}")
    a("v_mul_f32 v25, s59, v57")
    for u in range(8):
        a(f"v_fma_f32 v{48+u}, v{48+u}, s59, -v25")
    for u in range(8):
        a(f"v_exp_f32 v{48+u}, v{48+u}")
    for u in range(8):
        a(f"v_cvt_pk_bf16_f32 v{8+u}, v{48+u}, v{48+u}")
        a(f"ds_write_b32 v56, v{8+u} offset:{u*256}")
    a("ds_read_b128 v[12:15], v3")
    a("ds_read_b128 v[16:19], v3 offset:64")
    a("v_add_f32 v48, v48, v49"); a("v_add_f32 v50, v50, v51"); a("v_add_f32 v52, v52, v53"); a("v_add_f32 v54, v54, v55")
    a("v_add_f32 v48, v48, v50"); a("v_add_f32 v52, v52, v54"); a("v_add_f32 v58, v48, v52")
    allreduce("v_add_f32", 58, 24)
    a("v_mov_b32 v26, v57"); a("v_mov_b32 v27, v58")
    a("s_lshl_b32 s10, s3, 3")
    a("v_mov_b32 v24, s10")
    a("v_mov_b32 v25, 1")
    a(f"ds_write_b64 v24, v[26:27] offset:{L_ML}")
    a("v_mov_b32 v24, 0")
    a("s_mov_b64 exec, 1")
    a(f"ds_add_u32 v24, v25 offset:{L_CNT+4}")
    a("s_mov_b64 exec, -1")
    a("s_waitcnt lgkmcnt(0)")
    for j in range(4):
        for w in range(4):
            a(f"v_and_b32 v{32+4*j+w}, v{12+j}, v{4+w}")
    for i in range(4): a(f"v_mov_b32 v{8+i}, 0")
    a("v_add_u32 v3, 128, v3")
    ts(4)
    def vstep(v, rel, load, waitn, build):
        t, j = v >> 2, v & 3
        ab, ob = 32 + 16 * (t & 1), 32 + 16 * ((t + 1) & 1)
        ppn, ppf = 12 + 4 * ((t + 1) & 1), 12 + 4 * (t & 1)
        s = slot(128 + v)
        if j == 0 and build:
            a("s_waitcnt lgkmcnt(0)")
            a(f"ds_read_b128 v[{ppf}:{ppf+3}], v3 offset:{rel*64}")
        a(f"s_waitcnt vmcnt({waitn})")
        a(f"v_mfma_f32_16x16x32_bf16 v[8:11], v[{ab+4*j}:{ab+4*j+3}], v[{s}:{s+3}], v[8:11]")
        if load: issue(128 + v + D, wait=False)
        if build:
            for w in range(4):
                a(f"v_and_b32 v{ob+4*j+w}, v{ppn+j}, v{4+w}")
    UL = D * 8 // math.gcd(D, 8)
    nit = (128 - D) // UL
    a(f"s_mov_b32 s11, {nit}")
    a("L_vloop:")
    for v in range(UL): vstep(v, v >> 2, True, D - 1, True)
    a(f"v_add_u32 v3, {UL//4*64}, v3")
    a("s_sub_u32 s11, s11, 1")
    a("s_cmp_lg_u32 s11, 0")
    a("s_cbranch_scc1 L_vloop")
    base = nit * UL
    a("s_lshl_b32 s10, s3, 2")
    a("v_mov_b32 v24, s10")
    a(f"s_mov_b32 s11, {SPIN}")
    a("L_fwait:")
    a(f"ds_read_b32 v25, v24 offset:{L_F}")
    a("s_waitcnt lgkmcnt(0)")
    a("v_cmp_ne_u32 vcc, -1, v25")
    a("s_cbranch_vccnz L_fok")
    a("s_sleep 2")
    a("s_sub_u32 s11, s11, 1")
    a("s_cmp_lg_u32 s11, 0")
    a("s_cbranch_scc1 L_fwait")
    a("L_fok:")
    a("v_and_b32 v26, 1, v30")
    a("v_lshlrev_b32 v26, 3, v26")
    a("v_lshl_add_u32 v26, v31, 4, v26")
    a(f"s_mul_i32 s10, s3, {OR_STRIDE}")
    a("v_add_u32 v26, s10, v26")
    for v in range(base, 128):
        ld = v + D < 128
        vstep(v, (v - base) >> 2, ld, D - 1 if ld else 127 - v, v < 124)
    ts(5)
    for i in range(4): a(f"v_mul_f32 v{8+i}, v{8+i}, v25")
    a("v_cvt_pk_bf16_f32 v12, v8, v9")
    a("v_cvt_pk_bf16_f32 v13, v10, v11")
    a(f"ds_write_b64 v26, v[12:13] offset:{L_OR}")
    a("v_lshlrev_b32 v14, 16, v12"); a("v_and_b32 v15, 0xffff0000, v12")
    a("v_lshlrev_b32 v16, 16, v13"); a("v_and_b32 v17, 0xffff0000, v13")
    for i in range(4): a(f"v_sub_f32 v{8+i}, v{8+i}, v{14+i}")
    a("v_cvt_pk_bf16_f32 v18, v8, v9")
    a("v_cvt_pk_bf16_f32 v19, v10, v11")
    a(f"ds_write_b64 v26, v[18:19] offset:{L_OR + 4*OR_STRIDE}")
    a("s_waitcnt lgkmcnt(0)")
    a("s_barrier")
    a("s_cmp_lg_u32 s3, 0")
    a("s_cbranch_scc1 L_done")
    a("s_cmp_ge_u32 s2, 128")
    a("s_cbranch_scc1 L_done")
    srd(SW, P_WS, WS_END)
    srd(SA, P_X, 4096)
    a("s_lshr_b32 s12, s2, 5")
    a("s_and_b32 s13, s2, 31")
    a("v_lshrrev_b32 v1, 2, v0")
    a("v_lshlrev_b32 v1, 11, v1")
    a("v_and_b32 v2, 3, v0")
    a("v_lshl_add_u32 v1, v2, 4, v1")
    a("s_lshl_b32 s10, s12, 17")
    a("s_lshl_b32 s11, s13, 6")
    a("s_add_u32 s10, s10, s11")
    a(f"s_add_u32 s60, s10, {WS_Y}")
    for u in (1, 2, 3): a(f"s_add_u32 s{60+u}, s60, {u*32768}")
    a("v_lshrrev_b32 v3, 1, v30")
    a("v_and_b32 v4, 1, v30")
    a("v_lshl_add_u32 v3, v4, 1, v3")
    a("v_lshl_add_u32 v3, v2, 2, v3")
    a("v_lshlrev_b32 v4, 2, v3")
    a("v_lshlrev_b32 v5, 1, v3")
    a("s_lshl_b32 s10, s12, 13")
    a("s_add_u32 s10, s10, s11")
    a(f"s_add_u32 s10, s10, {WS_MOD}")
    a(f"buffer_load_dword v6, v4, {sw}, s10 offen sc1")
    a("s_lshl_b32 s10, s12, 10")
    a("s_lshl_b32 s14, s13, 5")
    a("s_add_u32 s10, s10, s14")
    a(f"buffer_load_ushort v7, v5, {sa}, s10 offen")
    a(f"s_mov_b32 s15, {SPIN}")
    a("L_t1poll:")
    for u in range(4):
        a(f"buffer_load_dwordx4 v[{8+4*u}:{11+4*u}], v1, {sw}, s{60+u} offen sc1")
    a("s_waitcnt vmcnt(0)")
    a("v_max3_u32 v24, v8, v9, v10"); a("v_max3_u32 v25, v11, v12, v13"); a("v_max3_u32 v26, v14, v15, v16")
    a("v_max3_u32 v27, v17, v18, v19"); a("v_max3_u32 v28, v20, v21, v22")
    a("v_max3_u32 v24, v24, v25, v26"); a("v_max3_u32 v27, v27, v28, v23"); a("v_max_u32 v24, v24, v27")
    a("v_cmp_eq_u32 vcc, -1, v24")
    a("s_cbranch_vccz L_t1ok")
    a("s_mov_b64 exec, vcc")
    a("s_sub_u32 s15, s15, 1")
    a("s_cmp_lg_u32 s15, 0")
    a("s_cbranch_scc1 L_t1poll")
    a("L_t1ok:")
    a("s_mov_b64 exec, -1")
    ts(6)
    a("s_cmp_lt_u32 s2, 43")
    a("s_cbranch_scc1 L_t1bar")
    a("s_and_b32 s10, s2, 0xe0")
    a("s_cmp_lg_u32 s10, 64")
    a("s_cbranch_scc1 L_t1nobar")
    a("L_t1bar:")
    a("s_barrier")
    a("L_t1nobar:")
    for i in range(4):
        a(f"v_add_f32 v{8+i}, v{8+i}, v{12+i}")
        a(f"v_add_f32 v{16+i}, v{16+i}, v{20+i}")
    for i in range(4): a(f"v_add_f32 v{8+i}, v{8+i}, v{16+i}")
    a("v_permlane32_swap_b32 v8, v9")
    a("v_permlane32_swap_b32 v10, v11")
    a("v_add_f32 v8, v8, v9")
    a("v_add_f32 v10, v10, v11")
    a("v_permlane16_swap_b32 v8, v10")
    a("v_add_f32 v8, v8, v10")
    a("v_add_f32_dpp v8, v8, v8 row_ror:4 row_mask:0xf bank_mask:0xf")
    a("v_add_f32_dpp v8, v8, v8 row_ror:8 row_mask:0xf bank_mask:0xf")
    bf16r(8)
    a("v_mul_f32 v8, v8, v6")
    bf16r(8)
    a("v_lshlrev_b32 v7, 16, v7")
    a("v_add_f32 v8, v8, v7")
    bf16r(8)
    a("s_lshl_b32 s10, s12, 11")
    a("s_add_u32 s10, s10, s11")
    a(f"s_add_u32 s10, s10, {WS_X1}")
    a("s_mov_b32 exec_lo, 0x000f000f"); a("s_mov_b32 exec_hi, 0x000f000f")
    a(f"buffer_store_dword v8, v4, {sw}, s10 offen sc1")
    ts(7)
    if hold:
        a("s_cmp_lg_u32 s2, 100")
        a("s_cbranch_scc1 L_done")
        a("L_hold:")
        a("s_memrealtime s[98:99]")
        a("s_waitcnt lgkmcnt(0)")
        a("s_sub_u32 s98, s98, s96")
        a(f"s_cmp_lt_u32 s98, {hold*100}")
        a("s_cbranch_scc1 L_hold")
    a("L_done:")
    fin()

    a("L_service:")
    a("s_sub_u32 s7, s3, 4")
    a("s_mov_b32 s62, 0x05040100"); a("s_mov_b32 s63, 0x07060302")
    a("s_mov_b32 s12, 0")
    a("s_cmp_ge_u32 s2, 128")
    a("s_cbranch_scc1 L_norole")
    a("s_cmp_ge_u32 s8, 6")
    a("s_cbranch_scc1 L_norole")
    a("s_cmp_lt_u32 s8, 2")
    a("s_cselect_b32 s12, 1, 2")
    a("L_norole:")
    a("v_lshlrev_b32 v1, 16, v30")
    a("v_lshl_add_u32 v1, v31, 4, v1")
    a("s_waitcnt lgkmcnt(0)")
    ts(0)
    a("s_load_dword s56, s[42:43], 0")
    srd(SW, P_WS, WS_END)
    a("s_cmp_eq_u32 s12, 0")
    a("s_cbranch_scc1 L_noprod1")
    a("s_lshl_b32 s13, s8, 4")
    a("s_add_u32 s13, s13, s9")
    a("s_lshl_b32 s14, s13, 4")
    a("s_lshl_b32 s15, s13, 5")
    a("s_cmp_eq_u32 s12, 1")
    a("s_cselect_b32 s14, s14, s15")
    a("s_cselect_b32 s15, 1024, 32")
    srd(SA, P_C, 4096)
    srd(SB, P_X, 4096)
    a("v_and_b32 v2, 3, v31")
    a("v_lshlrev_b32 v2, 10, v2")
    a("v_lshrrev_b32 v3, 2, v31")
    a("v_lshl_add_u32 v2, v3, 6, v2")
    a("v_lshl_add_u32 v2, v30, 4, v2")
    a("s_lshl_b32 s10, s7, 8")
    a(f"buffer_load_dwordx4 v[16:19], v2, {sa}, s10 offen")
    a("v_lshlrev_b32 v2, 4, v0")
    a("s_lshl_b32 s10, s7, 10")
    a(f"buffer_load_dwordx4 v[20:23], v2, {sb_}, s10 offen")
    a("v_lshlrev_b32 v2, 10, v30")
    a("v_lshl_add_u32 v2, v31, 1, v2")
    a("s_and_b32 s10, s14, 511")
    a("s_lshl_b32 s10, s10, 1")
    a(f"buffer_load_ushort v24, v2, {sb_}, s10 offen")
    srd(SA, P_WM, 512 * 6144)
    a("v_mul_u32_u24 v2, 49152, v30")
    a("v_and_b32 v3, 7, v31")
    a("v_lshl_add_u32 v2, v3, 2, v2")
    a("v_lshrrev_b32 v3, 3, v31")
    a("v_mul_u32_u24 v3, s15, v3")
    a("v_add_u32 v2, v2, v3")
    a(f"s_mul_i32 s10, s7, {128*6144}")
    a("s_lshl_b32 s11, s14, 1")
    a("s_add_u32 s10, s10, s11")
    for ks in range(4):
        for e in range(8):
            a(f"buffer_load_dword v{32+ks*8+e}, v2, {sa}, s10 offen{WP}")
            a(f"s_add_u32 s10, s10, {6144 if e < 7 else 6144*25}")
    a("L_noprod1:")
    srd(SA, P_WQ, 512 * 8192)
    a("s_lshl_b32 s57, s7, 20")
    a("s_lshl_b32 s10, s4, 8")
    a("s_add_u32 s57, s57, s10")
    RG = lambda i: 96 + 32 * i
    def wq_issue(i):
        ks, e = i >> 3, i & 7
        r = RG(ks + 1) + 4 * e
        a(f"buffer_load_dwordx4 v[{r}:{r+3}], v1, {sa}, s57 offen{WP}")
        a(f"s_add_u32 s57, s57, {8192 if e < 7 else 8192*25}")
    for i in range(DW): wq_issue(i)
    a("v_mov_b32 v4, 0"); a("v_mov_b32 v5, 0"); a("v_mov_b32 v8, -1"); a("v_mov_b32 v9, -1"); a("v_mov_b32 v10, -1"); a("v_mov_b32 v11, -1")
    a(f"ds_write_b64 v4, v[4:5] offset:{L_CNT}")
    a(f"ds_write_b128 v4, v[8:11] offset:{L_F}")
    a("s_waitcnt lgkmcnt(0)")
    a("s_barrier")
    a("s_mul_i32 s56, s56, 1664525")
    a("s_add_u32 s56, s56, 1013904223")
    a("s_cmp_eq_u32 s12, 0")
    a("s_cbranch_scc1 L_noprod2")
    a(f"s_waitcnt vmcnt({DW+32+1})")
    a(f"s_mov_b32 s59, {f2u(-1.4426950408889634):#x}")
    for i in range(4):
        a(f"v_lshlrev_b32 v{64+2*i}, 16, v{16+i}"); a(f"v_and_b32 v{65+2*i}, 0xffff0000, v{16+i}")
        a(f"v_lshlrev_b32 v{80+2*i}, 16, v{20+i}"); a(f"v_and_b32 v{81+2*i}, 0xffff0000, v{20+i}")
    for i in range(8): a(f"v_mul_f32 v{72+i}, s59, v{64+i}")
    for i in range(8): a(f"v_exp_f32 v{72+i}, v{72+i}")
    for i in range(8): a(f"v_add_f32 v{72+i}, 1.0, v{72+i}")
    for i in range(8): a(f"v_rcp_f32 v{72+i}, v{72+i}")
    for i in range(8): a(f"v_mul_f32 v{64+i}, v{64+i}, v{72+i}")
    for i in range(4): a(f"v_cvt_pk_bf16_f32 v{4+i}, v{64+2*i}, v{65+2*i}")
    for q in (1, 2, 3):
        for i in range(4):
            a(f"v_mov_b32_dpp v{4+4*q+i}, v{4+i} row_shl:{4*q} row_mask:0xf bank_mask:0xf")
    def ln_stats(x0, t0, vm, vs, tmp):
        a(f"v_add_f32 v{t0}, v{x0}, v{x0+1}"); a(f"v_add_f32 v{t0+1}, v{x0+2}, v{x0+3}")
        a(f"v_add_f32 v{t0+2}, v{x0+4}, v{x0+5}"); a(f"v_add_f32 v{t0+3}, v{x0+6}, v{x0+7}")
        a(f"v_add_f32 v{t0}, v{t0}, v{t0+1}"); a(f"v_add_f32 v{t0+2}, v{t0+2}, v{t0+3}")
        a(f"v_add_f32 v{vm}, v{t0}, v{t0+2}")
        allreduce("v_add_f32", vm, tmp)
        a(f"v_mul_f32 v{vm}, {f2u(1/512):#x}, v{vm}")
        for i in range(8): a(f"v_sub_f32 v{t0+i}, v{x0+i}, v{vm}")
        a(f"v_mul_f32 v{vs}, v{t0}, v{t0}"); a(f"v_mul_f32 v{tmp}, v{t0+1}, v{t0+1}")
        for i in (2, 4, 6):
            a(f"v_fmac_f32 v{vs}, v{t0+i}, v{t0+i}"); a(f"v_fmac_f32 v{tmp}, v{t0+i+1}, v{t0+i+1}")
        a(f"v_add_f32 v{vs}, v{vs}, v{tmp}")
        allreduce("v_add_f32", vs, tmp)
        bf16r(vm)
        a(f"v_mul_f32 v{vs}, {f2u(1/512):#x}, v{vs}")
        bf16r(vs)
        a(f"v_add_f32 v{vs}, {f2u(1e-5):#x}, v{vs}")
        bf16r(vs)
        a(f"v_sqrt_f32 v{vs}, v{vs}")
        bf16r(vs)
    ln_stats(80, 88, 26, 27, 25)
    a("s_lshl_b32 s10, s7, 3")
    a("v_mov_b32 v25, s10")
    a(f"ds_write_b64 v25, v[26:27] offset:{L_ST}")
    for ks in range(4):
        a(f"s_waitcnt vmcnt({DW + 8*(3-ks)})")
        for c in range(2):
            for t in range(4):
                a(f"v_perm_b32 v{64+ks*8+c*4+t}, v{32+ks*8+2*t+1}, v{32+ks*8+2*t}, s{62+c}")
        for c in range(2):
            cc = "0" if ks == 0 else f"v[{20+4*c}:{23+4*c}]" if c == 0 else f"v[{96}:{99}]"
            d = f"v[20:23]" if c == 0 else "v[96:99]"
            a(f"v_mfma_f32_16x16x32_bf16 {d}, v[{4+4*ks}:{7+4*ks}], v[{64+ks*8+c*4}:{67+ks*8+c*4}], {cc}")
    a("s_lshl_b32 s10, s7, 9")
    a("v_lshl_add_u32 v25, v31, 5, s10")
    a("s_mov_b64 exec, 0xffff")
    a(f"ds_write_b128 v25, v[20:23] offset:{L_MODP}")
    a(f"ds_write_b128 v25, v[96:99] offset:{L_MODP+16}")
    a("s_mov_b64 exec, 1")
    a("v_mov_b32 v26, 0"); a("v_mov_b32 v27, 1")
    a(f"ds_add_rtn_u32 v26, v26, v27 offset:{L_CNT}")
    a("s_mov_b64 exec, -1")
    a("s_waitcnt lgkmcnt(0)")
    a("v_readfirstlane_b32 s10, v26")
    a("s_cmp_lg_u32 s10, 3")
    a("s_cbranch_scc1 L_noprod2")
    a("v_lshlrev_b32 v25, 4, v31")
    a("v_lshl_add_u32 v25, v30, 2, v25")
    a(f"v_add_u32 v25, {L_MODP}, v25")
    for w in range(4):
        a(f"ds_read2st64_b32 v[{4+2*w}:{5+2*w}], v25 offset0:{2*w} offset1:{2*w+1}")
    a("v_lshlrev_b32 v26, 3, v30")
    a(f"ds_read_b64 v[12:13], v26 offset:{L_ST}")
    a("s_waitcnt lgkmcnt(0)")
    a("v_add_f32 v4, v4, v6"); a("v_add_f32 v5, v5, v7"); a("v_add_f32 v8, v8, v10"); a("v_add_f32 v9, v9, v11")
    a("v_add_f32 v4, v4, v8"); a("v_add_f32 v5, v5, v9")
    bf16r(4); bf16r(5)
    a("s_cmp_eq_u32 s12, 1")
    a("s_cbranch_scc0 L_modfin")
    a("v_lshlrev_b32 v24, 16, v24")
    a("v_rcp_f32 v13, v13")
    a("v_sub_f32 v24, v24, v12")
    a("v_add_f32 v5, 1.0, v5")
    bf16r(24); bf16r(5)
    a("v_mul_f32 v24, v24, v13")
    bf16r(24)
    a("v_mul_f32 v24, v24, v5")
    bf16r(24)
    a("v_add_f32 v24, v24, v4")
    a("v_mov_b32_dpp v6, v24 quad_perm:[1,0,3,2] row_mask:0xf bank_mask:0xf")
    a("v_cvt_pk_bf16_f32 v6, v24, v6")
    a("v_mov_b32 v7, s56")
    a("v_lshlrev_b32 v8, 11, v30")
    a("v_lshl_add_u32 v8, v31, 2, v8")
    a("s_lshl_b32 s10, s13, 6")
    a(f"s_add_u32 s10, s10, {WS_HG}")
    a("s_mov_b32 exec_lo, 0x55555555"); a("s_mov_b32 exec_hi, 0x55555555")
    a(f"buffer_store_dwordx2 v[6:7], v8, {sw}, s10 offen sc1")
    a("s_mov_b64 exec, -1")
    ts(1)
    a("s_branch L_prodst")
    a("L_modfin:")
    a("s_lshr_b32 s10, s13, 4")
    a("s_cmp_lg_u32 s10, 4")
    a("s_cbranch_scc1 L_modst")
    a("v_add_f32 v4, 1.0, v4"); a("v_add_f32 v5, 1.0, v5")
    bf16r(4); bf16r(5)
    a("L_modst:")
    a("v_lshlrev_b32 v8, 13, v30")
    a("v_lshl_add_u32 v8, v31, 2, v8")
    a("s_lshl_b32 s10, s13, 7")
    a(f"s_add_u32 s10, s10, {WS_MOD - 4096}")
    a(f"buffer_store_dword v4, v8, {sw}, s10 offen sc1")
    a(f"buffer_store_dword v5, v8, {sw}, s10 offen offset:64 sc1")
    a("s_waitcnt vmcnt(0)")
    a("v_mov_b32 v4, 0"); a("v_mov_b32 v5, 1")
    a("s_mov_b64 exec, 1")
    a("global_atomic_add v4, v5, s[40:41] sc1")
    a("s_mov_b64 exec, -1")
    a("L_prodst:")
    a("s_waitcnt vmcnt(0)")
    a("L_noprod2:")
    def perms(ks):
        for c in range(8):
            for t in range(4):
                a(f"v_perm_b32 v{RG(ks)+c*4+t}, v{RG(ks+1)+4*(2*t+1)+(c>>1)}, v{RG(ks+1)+4*(2*t)+(c>>1)}, s{62+(c&1)}")
    def stream_w(issue_fn, first):
        done = 0
        for i in range(first, 32):
            a(f"s_waitcnt vmcnt({DW-1})")
            issue_fn(i)
            landed = i + 1 - DW
            while (done + 1) * 8 <= landed:
                perms(done); done += 1
        return done
    done = stream_w(wq_issue, DW)
    a("s_cmp_lg_u32 s7, 0")
    a("s_cbranch_scc1 L_noreset")
    a("v_mov_b32 v8, -1"); a("v_mov_b32 v9, -1"); a("v_mov_b32 v10, -1"); a("v_mov_b32 v11, -1")
    a("v_lshlrev_b32 v2, 4, v0")
    a("s_lshl_b32 s10, s5, 17")
    a("s_lshl_b32 s11, s4, 12")
    a("s_add_u32 s10, s10, s11")
    a("s_lshl_b32 s11, s6, 11")
    a("s_add_u32 s10, s10, s11")
    a(f"s_add_u32 s10, s10, {WS_Y}")
    a(f"buffer_store_dwordx4 v[8:11], v2, {sw}, s10 offen sc1")
    a(f"buffer_store_dwordx4 v[8:11], v2, {sw}, s10 offen offset:1024 sc1")
    a("s_mov_b64 exec, 1")
    a("s_lshl_b32 s10, s2, 7")
    a(f"s_add_u32 s10, s10, {WS_ML}")
    a(f"buffer_store_dwordx4 v[8:11], v2, {sw}, s10 offen sc1")
    a("s_mov_b64 exec, 15")
    a("s_lshl_b32 s10, s2, 6")
    a(f"s_add_u32 s10, s10, {WS_X1}")
    a(f"buffer_store_dwordx4 v[8:11], v2, {sw}, s10 offen sc1")
    a(f"s_add_u32 s10, s10, {WS_HH - WS_X1}")
    a(f"buffer_store_dwordx4 v[8:11], v2, {sw}, s10 offen sc1")
    a("s_mov_b64 exec, -1")
    a("L_noreset:")
    a("v_and_b32 v2, 3, v31")
    a("v_lshlrev_b32 v2, 7, v2")
    a("v_lshl_add_u32 v2, v30, 5, v2")
    a("s_lshl_b32 s10, s5, 11")
    a("s_lshl_b32 s11, s7, 9")
    a("s_add_u32 s10, s10, s11")
    a(f"s_add_u32 s10, s10, {WS_HG}")
    a(f"s_mov_b32 s15, {SPIN}")
    a(f"buffer_load_dwordx4 v[4:7], v2, {sw}, s10 offen sc1")
    a(f"buffer_load_dwordx4 v[8:11], v2, {sw}, s10 offen offset:16 sc1")
    a("s_waitcnt vmcnt(2)")
    while done < 4:
        perms(done); done += 1
    ts(2)
    a("s_branch L_hchk")
    a("L_hpoll:")
    a(f"buffer_load_dwordx4 v[4:7], v2, {sw}, s10 offen sc1")
    a(f"buffer_load_dwordx4 v[8:11], v2, {sw}, s10 offen offset:16 sc1")
    a("L_hchk:")
    a("s_waitcnt vmcnt(0)")
    a("v_xor_b32 v12, s56, v5"); a("v_xor_b32 v13, s56, v7"); a("v_xor_b32 v14, s56, v9"); a("v_xor_b32 v15, s56, v11")
    a("v_or3_b32 v12, v12, v13, v14")
    a("v_or_b32 v12, v12, v15")
    a("v_cmp_ne_u32 vcc, 0, v12")
    a("s_cbranch_vccz L_hok")
    a("s_sub_u32 s15, s15, 1")
    a("s_cmp_lg_u32 s15, 0")
    a("s_cbranch_scc1 L_hpoll")
    a("L_hok:")
    ts(3)
    ACC = RG(4)
    for q in range(4):
        for i in range(4):
            a(f"v_mov_b32_dpp v{12+4*q+i}, v{4+2*i} quad_perm:[{q},{q},{q},{q}] row_mask:0xf bank_mask:0xf")
    def gemv32(areg):
        for ks in range(4):
            for c in range(8):
                cc = "0" if ks == 0 else f"v[{ACC+4*c}:{ACC+4*c+3}]"
                a(f"v_mfma_f32_16x16x32_bf16 v[{ACC+4*c}:{ACC+4*c+3}], v[{areg+4*ks}:{areg+4*ks+3}], v[{RG(ks)+4*c}:{RG(ks)+4*c+3}], {cc}")
    gemv32(12)
    a("s_lshl_b32 s10, s7, 9")
    a("v_lshl_add_u32 v2, v31, 5, s10")
    for c in range(0, 8, 2):
        a(f"ds_write2_b32 v2, v{ACC+4*c}, v{ACC+4*c+4} offset0:{c} offset1:{c+1}")
    a("s_waitcnt lgkmcnt(0)")
    ts(4)
    a("s_barrier")
    a("s_cmp_lg_u32 s7, 0")
    a("s_cbranch_scc1 L_noarr")
    a("v_mov_b32 v4, 0"); a("v_mov_b32 v5, 1")
    a("s_mov_b64 exec, 1")
    a("global_atomic_add v4, v5, s[40:41] sc1")
    a("s_mov_b64 exec, -1")
    a("s_waitcnt vmcnt(0)")
    a("L_noarr:")
    srd(SA, P_WO, 4096 * 1024)
    a("v_lshlrev_b32 v1, 13, v30")
    a("v_lshl_add_u32 v1, v31, 4, v1")
    a("s_lshl_b32 s57, s4, 17")
    a("s_lshl_b32 s10, s7, 8")
    a("s_add_u32 s57, s57, s10")
    def wo_issue(i):
        ks, e = i >> 3, i & 7
        r = RG(ks + 1) + 4 * e
        a(f"buffer_load_dwordx4 v[{r}:{r+3}], v1, {sa}, s57 offen{WP}")
        a(f"s_add_u32 s57, s57, {1024 if e < 7 else 1024*25}")
    DWO = 4
    done = 0
    for i in range(32):
        if i >= DWO: a(f"s_waitcnt vmcnt({DWO-1})")
        wo_issue(i)
        while (done + 1) * 8 <= i + 1 - DWO:
            perms(done); done += 1
    a("s_waitcnt vmcnt(0)")
    while done < 4:
        perms(done); done += 1
    a("s_mov_b32 s12, 0")
    a("s_lshl_b32 s14, s7, 14")
    a(f"s_add_u32 s14, s14, {L_STG}")
    a("s_cmp_lt_u32 s2, 43")
    a("s_cbranch_scc0 L_not2w")
    a("s_mov_b32 s12, 1")
    srd(SA, P_WG, 512 * 2752); srd(SB, P_WU, 512 * 2752)
    a("v_mul_u32_u24 v2, 2752, v0")
    a("s_lshl_b32 s10, s2, 6")
    a("s_lshl_b32 s11, s7, 4")
    a("s_add_u32 s10, s10, s11")
    for i in range(8):
        for m, s in enumerate((sa, sb_)):
            a(f"s_add_u32 m0, s14, {m*8192 + i*1024}")
            a(f"buffer_load_dwordx4 v2, {s}, s10 offen{WP} lds")
        a(f"s_add_u32 s10, s10, {64*2752}")
        if i % 2 == 1: a("s_waitcnt vmcnt(0)")
    a("v_bfe_u32 v2, v31, 1, 1")
    a("v_lshlrev_b32 v2, 13, v2")
    a("v_lshl_add_u32 v2, v30, 7, v2")
    a("v_lshrrev_b32 v3, 2, v31")
    a("v_lshl_add_u32 v2, v3, 2, v2")
    a("v_and_b32 v3, 1, v31")
    a("v_lshl_add_u32 v2, v3, 1, v2")
    a("v_add_u32 v2, s14, v2")
    def gather16(nks, rowb):
        for ks in range(nks):
            for e in range(8):
                a(f"ds_read_u16 v{4+e}, v2 offset:{(ks*32+e)*rowb}")
            a("s_waitcnt lgkmcnt(0)")
            for t in range(4):
                a(f"v_lshl_or_b32 v{32+ks*4+t}, v{5+2*t}, 16, v{4+2*t}")
    gather16(16, 16)
    a("s_branch L_not3w")
    a("L_not2w:")
    a("s_and_b32 s10, s2, 0xe0")
    a("s_cmp_lg_u32 s10, 64")
    a("s_cbranch_scc1 L_not3w")
    a("s_mov_b32 s12, 2")
    srd(SA, P_WD, 1376 * 1024)
    a("v_lshrrev_b32 v2, 1, v0")
    a("v_lshlrev_b32 v2, 10, v2")
    a("v_and_b32 v3, 1, v0")
    a("v_lshl_add_u32 v2, v3, 4, v2")
    a("s_and_b32 s10, s2, 31")
    a("s_lshl_b32 s10, s10, 5")
    a(f"s_mul_i32 s11, s7, {11*32*1024}")
    a("s_add_u32 s10, s10, s11")
    for i in range(11):
        a(f"s_add_u32 m0, s14, {i*1024}")
        a(f"buffer_load_dwordx4 v2, {sa}, s10 offen{WP} lds")
        a(f"s_add_u32 s10, s10, {32*1024}")
        if i % 4 == 3: a("s_waitcnt vmcnt(0)")
    a("s_waitcnt vmcnt(0)")
    a("v_lshlrev_b32 v2, 8, v30")
    a("v_lshl_add_u32 v2, v31, 1, v2")
    a("v_add_u32 v2, s14, v2")
    gather16(11, 32)
    a("L_not3w:")
    ts(5)
    a("s_cmp_lg_u32 s7, 0")
    a("s_cbranch_scc1 L_noml")
    a("v_mov_b32 v4, 0")
    a(f"s_mov_b32 s15, {SPIN}")
    a("L_arr:")
    a("global_load_dword v5, v4, s[40:41] sc1")
    a("s_waitcnt vmcnt(0)")
    a(f"v_cmp_le_u32 vcc, {ARRIVE}, v5")
    a("s_cbranch_vccnz L_arrok")
    a("s_sleep 16")
    a("s_sub_u32 s15, s15, 1")
    a("s_cmp_lg_u32 s15, 0")
    a("s_cbranch_scc1 L_arr")
    a("L_arrok:")
    a(f"s_mov_b32 s15, {SPIN}")
    a("L_mlw:")
    a(f"ds_read_b32 v5, v4 offset:{L_CNT+4}")
    a("s_waitcnt lgkmcnt(0)")
    a("v_cmp_eq_u32 vcc, 4, v5")
    a("s_cbranch_vccnz L_mlok")
    a("s_sleep 4")
    a("s_sub_u32 s15, s15, 1")
    a("s_cmp_lg_u32 s15, 0")
    a("s_cbranch_scc1 L_mlw")
    a("L_mlok:")
    a("v_and_b32 v5, 3, v0")
    a("v_lshlrev_b32 v6, 3, v5")
    a(f"ds_read_b64 v[8:9], v6 offset:{L_ML}")
    a(f"s_mov_b32 s59, {LOG2E:#x}")
    a("s_waitcnt lgkmcnt(0)")
    a("v_max_f32_dpp v10, v8, v8 quad_perm:[1,0,3,2] row_mask:0xf bank_mask:0xf")
    a("v_max_f32_dpp v10, v10, v10 quad_perm:[2,3,0,1] row_mask:0xf bank_mask:0xf")
    a("v_sub_f32 v11, v8, v10")
    a("v_mul_f32 v11, s59, v11")
    a("v_exp_f32 v11, v11")
    a("v_mul_f32 v11, v11, v9")
    a("v_add_f32_dpp v11, v11, v11 quad_perm:[1,0,3,2] row_mask:0xf bank_mask:0xf")
    a("v_add_f32_dpp v11, v11, v11 quad_perm:[2,3,0,1] row_mask:0xf bank_mask:0xf")
    a("s_lshl_b32 s10, s2, 7")
    a(f"s_add_u32 s10, s10, {WS_ML}")
    a("s_mov_b64 exec, 1")
    a(f"buffer_store_dwordx2 v[10:11], v4, {sw}, s10 offen sc1")
    a("s_mov_b64 exec, -1")
    a("s_xor_b32 s10, s10, 1024")
    a(f"s_mov_b32 s15, {SPIN}")
    a("L_mlp:")
    a(f"buffer_load_dwordx2 v[12:13], v4, {sw}, s10 offen sc1")
    a("s_waitcnt vmcnt(0)")
    a("v_max_u32 v14, v12, v13")
    a("v_cmp_ne_u32 vcc, -1, v14")
    a("s_cbranch_vccnz L_mlpok")
    a("s_sleep 4")
    a("s_sub_u32 s15, s15, 1")
    a("s_cmp_lg_u32 s15, 0")
    a("s_cbranch_scc1 L_mlp")
    a("L_mlpok:")
    a("v_max_f32 v14, v10, v12")
    a("v_sub_f32 v10, v10, v14"); a("v_sub_f32 v12, v12, v14"); a("v_sub_f32 v8, v8, v14")
    a("v_mul_f32 v10, s59, v10"); a("v_mul_f32 v12, s59, v12"); a("v_mul_f32 v8, s59, v8")
    a("v_exp_f32 v10, v10"); a("v_exp_f32 v12, v12"); a("v_exp_f32 v8, v8")
    a("v_mul_f32 v10, v10, v11")
    a("v_fmac_f32 v10, v12, v13")
    a("v_rcp_f32 v10, v10")
    a("v_mul_f32 v8, v8, v10")
    a("v_lshlrev_b32 v6, 2, v5")
    a(f"ds_write_b32 v6, v8 offset:{L_F}")
    a("s_waitcnt lgkmcnt(0)")
    a("L_noml:")
    ts(6)
    a("v_and_b32 v2, 7, v31")
    a(f"v_mul_u32_u24 v2, {OR_STRIDE}, v2")
    a("v_lshl_add_u32 v2, v30, 4, v2")
    a("v_lshlrev_b32 v3, 5, v31")
    a("v_lshl_add_u32 v3, v30, 4, v3")
    a("s_lshl_b32 s10, s5, 17")
    a("s_lshl_b32 s11, s4, 12")
    a("s_add_u32 s10, s10, s11")
    a("s_lshl_b32 s11, s6, 11")
    a("s_add_u32 s10, s10, s11")
    a("s_lshl_b32 s11, s7, 9")
    a("s_add_u32 s10, s10, s11")
    a(f"s_add_u32 s10, s10, {WS_Y}")
    a("s_barrier")
    ts(7)
    for ks in range(4):
        a(f"ds_read_b128 v[{12+4*ks}:{15+4*ks}], v2 offset:{L_OR + ks*64}")
    for ks in range(4):
        a(f"s_waitcnt lgkmcnt({3-ks if not debug else 0})")
        for c in range(8):
            cc = "0" if ks == 0 else f"v[{ACC+4*c}:{ACC+4*c+3}]"
            a(f"v_mfma_f32_16x16x32_bf16 v[{ACC+4*c}:{ACC+4*c+3}], v[{12+4*ks}:{15+4*ks}], v[{RG(ks)+4*c}:{RG(ks)+4*c+3}], {cc}")
    for c in range(8):
        a(f"v_add_f32 v{ACC+4*c}, v{ACC+4*c}, v{ACC+4*c+1}")
        a(f"v_add_f32 v{ACC+4*c+2}, v{ACC+4*c+2}, v{ACC+4*c+3}")
        a(f"v_add_f32 v{4+c}, v{ACC+4*c}, v{ACC+4*c+2}")
    for c in range(4): a(f"v_permlane16_swap_b32 v{4+c}, v{8+c}")
    for c in range(4): a(f"v_add_f32 v{4+c}, v{4+c}, v{8+c}")
    a("s_mov_b32 exec_hi, 0")
    a(f"buffer_store_dwordx4 v[4:7], v3, {sw}, s10 offen sc1")
    a("s_mov_b64 exec, -1")
    ts(8)
    a("s_cmp_eq_u32 s12, 0")
    a("s_cbranch_scc1 L_done2")
    a("s_cmp_eq_u32 s12, 2")
    a("s_cbranch_scc1 L_t3")
    a("v_lshlrev_b32 v2, 5, v0")
    a("s_lshl_b32 s10, s7, 13")
    a(f"s_add_u32 s10, s10, {WS_MOD + 2048}")
    a(f"buffer_load_dwordx4 v[224:227], v2, {sw}, s10 offen sc1")
    a(f"buffer_load_dwordx4 v[228:231], v2, {sw}, s10 offen offset:16 sc1")
    a(f"buffer_load_dwordx4 v[232:235], v2, {sw}, s10 offen offset:2048 sc1")
    a(f"buffer_load_dwordx4 v[236:239], v2, {sw}, s10 offen offset:2064 sc1")
    a("s_lshl_b32 s10, s7, 11")
    a(f"s_add_u32 s10, s10, {WS_X1}")
    a(f"s_mul_i32 s11, s7, {H2_STRIDE}")
    a("v_lshl_add_u32 v3, v0, 4, s11")
    a("v_and_b32 v1, 3, v31")
    a(f"v_mul_u32_u24 v1, {H2_STRIDE}, v1")
    a("v_lshl_add_u32 v1, v30, 4, v1")
    a(f"s_mov_b32 s15, {SPIN}")
    a("s_barrier")
    a("L_t2poll:")
    a(f"buffer_load_dwordx4 v[4:7], v2, {sw}, s10 offen sc1")
    a(f"buffer_load_dwordx4 v[8:11], v2, {sw}, s10 offen offset:16 sc1")
    a("s_waitcnt vmcnt(0)")
    a("v_max3_u32 v12, v4, v5, v6"); a("v_max3_u32 v13, v7, v8, v9"); a("v_max3_u32 v12, v12, v10, v11"); a("v_max_u32 v12, v12, v13")
    a("v_cmp_eq_u32 vcc, -1, v12")
    a("s_cbranch_vccz L_t2ok")
    a("s_mov_b64 exec, vcc")
    a("s_sub_u32 s15, s15, 1")
    a("s_cmp_lg_u32 s15, 0")
    a("s_cbranch_scc1 L_t2poll")
    a("L_t2ok:")
    a("s_mov_b64 exec, -1")
    ts(9)
    ln_stats(4, 12, 20, 21, 22)
    a("v_rcp_f32 v21, v21")
    def rnd8(r):
        for i in range(4): a(f"v_cvt_pk_bf16_f32 v{12+i}, v{r+2*i}, v{r+2*i+1}")
        for i in range(4):
            a(f"v_lshlrev_b32 v{r+2*i}, 16, v{12+i}"); a(f"v_and_b32 v{r+2*i+1}, 0xffff0000, v{12+i}")
    for i in range(8): a(f"v_sub_f32 v{4+i}, v{4+i}, v20")
    rnd8(4)
    for i in range(8): a(f"v_mul_f32 v{4+i}, v{4+i}, v21")
    rnd8(4)
    for i in range(8): a(f"v_mul_f32 v{4+i}, v{4+i}, v{232+i}")
    rnd8(4)
    for i in range(8): a(f"v_add_f32 v{4+i}, v{4+i}, v{224+i}")
    for i in range(4): a(f"v_cvt_pk_bf16_f32 v{12+i}, v{4+2*i}, v{5+2*i}")
    a(f"ds_write_b128 v3, v[12:15] offset:{L_H2}")
    a("s_waitcnt lgkmcnt(0)")
    a("s_barrier")
    for ks in range(16):
        a(f"ds_read_b128 v[{96+4*ks}:{99+4*ks}], v1 offset:{L_H2 + ks*64}")
        if ks == 14: a("s_waitcnt lgkmcnt(14)")
    for ks in range(16):
        a(f"s_waitcnt lgkmcnt({min(15-ks, 14) if not debug else 0})")
        d = 4 + 4 * (ks & 1)
        cc = "0" if ks < 2 else f"v[{d}:{d+3}]"
        a(f"v_mfma_f32_16x16x32_bf16 v[{d}:{d+3}], v[{32+4*ks}:{35+4*ks}], v[{96+4*ks}:{99+4*ks}], {cc}")
    for i in range(4): a(f"v_add_f32 v{4+i}, v{4+i}, v{8+i}")
    a("v_cvt_pk_bf16_f32 v12, v4, v5"); a("v_cvt_pk_bf16_f32 v13, v6, v7")
    a("v_lshlrev_b32 v4, 16, v12"); a("v_and_b32 v5, 0xffff0000, v12"); a("v_lshlrev_b32 v6, 16, v13"); a("v_and_b32 v7, 0xffff0000, v13")
    K1 = -2.0 * math.sqrt(2.0 / math.pi) * 1.4426950408889634
    a(f"s_mov_b32 s10, {f2u(K1 * 0.044715):#x}")
    a(f"v_mov_b32 v14, {f2u(K1):#x}")
    for i in range(2): a(f"v_mul_f32 v{8+i}, v{4+i}, v{4+i}")
    for i in range(2): a(f"v_fma_f32 v{8+i}, v{8+i}, s10, v14")
    for i in range(2): a(f"v_mul_f32 v{8+i}, v{8+i}, v{4+i}")
    for i in range(2): a(f"v_exp_f32 v{8+i}, v{8+i}")
    for i in range(2): a(f"v_add_f32 v{8+i}, 1.0, v{8+i}")
    for i in range(2): a(f"v_rcp_f32 v{8+i}, v{8+i}")
    for i in range(2): a(f"v_mul_f32 v{8+i}, v{8+i}, v{4+i}")
    a("v_cvt_pk_bf16_f32 v12, v8, v9")
    a("v_lshlrev_b32 v8, 16, v12"); a("v_and_b32 v9, 0xffff0000, v12")
    a("v_mul_f32 v8, v8, v6"); a("v_mul_f32 v9, v9, v7")
    a("v_cvt_pk_bf16_f32 v12, v8, v9")
    a("v_lshlrev_b32 v2, 4, v31")
    a("v_lshl_add_u32 v2, v30, 2, v2")
    a("s_lshl_b32 s10, s2, 8")
    a("s_lshl_b32 s11, s7, 6")
    a("s_add_u32 s10, s10, s11")
    a(f"s_add_u32 s10, s10, {WS_HH}")
    a("s_mov_b32 exec_lo, 0x000f000f"); a("s_mov_b32 exec_hi, 0x000f000f")
    a(f"buffer_store_dword v12, v2, {sw}, s10 offen sc1")
    ts(10)
    a("L_done2:")
    fin()
    a("L_t3:")
    srd(SA, P_OUT, 4096)
    a("s_and_b32 s13, s2, 31")
    a("v_and_b32 v1, 3, v31")
    a("v_lshrrev_b32 v2, 2, v31")
    a("v_lshlrev_b32 v3, 8, v2")
    a("v_lshl_add_u32 v3, v30, 6, v3")
    a("v_lshl_add_u32 v3, v1, 4, v3")
    a(f"s_mul_i32 s10, s7, {11*256}")
    a(f"s_add_u32 s10, s10, {WS_HH}")
    a("v_lshlrev_b32 v20, 13, v1")
    a("v_lshl_add_u32 v20, v30, 4, v20")
    a("s_lshl_b32 s11, s13, 6")
    a(f"s_add_u32 s14, s11, {WS_MOD + 6144}")
    a(f"buffer_load_dwordx4 v[224:227], v20, {sw}, s14 offen sc1")
    a("v_lshlrev_b32 v20, 11, v1")
    a("v_lshl_add_u32 v20, v30, 4, v20")
    a(f"s_add_u32 s14, s11, {WS_X1}")
    a("s_cmp_eq_u32 s7, 3")
    a("s_cselect_b32 s11, 2, 3")
    a("v_cmp_gt_u32 vcc, s11, v2")
    a("s_mov_b64 s[64:65], vcc")
    a("s_lshl_b32 s11, s7, 10")
    a("v_lshl_add_u32 v21, v0, 4, s11")
    a("v_lshlrev_b32 v22, 4, v0")
    a(f"s_mov_b32 s15, {SPIN}")
    a("s_barrier")
    a("L_t3poll:")
    for i in range(3):
        a(f"buffer_load_dwordx4 v[{4+4*i}:{7+4*i}], v3, {sw}, s10 offen offset:{i*1024} sc1")
    a(f"buffer_load_dwordx4 v[228:231], v20, {sw}, s14 offen sc1")
    a("s_waitcnt vmcnt(0)")
    a("v_max3_u32 v16, v12, v13, v14"); a("v_max_u32 v16, v16, v15")
    a("v_cndmask_b32 v16, 0, v16, s[64:65]")
    a("v_max3_u32 v17, v4, v5, v6"); a("v_max3_u32 v18, v7, v8, v9"); a("v_max3_u32 v16, v16, v10, v11")
    a("v_max3_u32 v19, v228, v229, v230"); a("v_max3_u32 v16, v16, v17, v18"); a("v_max3_u32 v16, v16, v19, v231")
    a("v_cmp_eq_u32 vcc, -1, v16")
    a("s_cbranch_vccz L_t3ok")
    a("s_mov_b64 exec, vcc")
    a("s_sub_u32 s15, s15, 1")
    a("s_cmp_lg_u32 s15, 0")
    a("s_cbranch_scc1 L_t3poll")
    a("L_t3ok:")
    a("s_mov_b64 exec, -1")
    ts(9)
    for ks in range(10):
        q = ks & 3
        d = 96 + 4 * q
        cc = "0" if ks < 4 else f"v[{d}:{d+3}]"
        a(f"v_mfma_f32_16x16x32_bf16 v[{d}:{d+3}], v[{32+4*ks}:{35+4*ks}], v[{4+4*(ks>>2)}:{7+4*(ks>>2)}], {cc}")
    a("s_cmp_eq_u32 s7, 3")
    a("s_cbranch_scc1 L_t3skip")
    a("v_mfma_f32_16x16x32_bf16 v[104:107], v[72:75], v[12:15], v[104:107]")
    a("L_t3skip:")
    a("s_nop 7")
    for q in (3, 0, 1, 2):
        a(f"s_mov_b32 exec_lo, {0x000F000F << (4*q):#x}"); a(f"s_mov_b32 exec_hi, {0x000F000F << (4*q):#x}")
        a(f"ds_write_b128 v21, v[{96+4*q}:{99+4*q}] offset:{L_T3}")
    a("s_mov_b64 exec, -1")
    a("s_waitcnt lgkmcnt(0)")
    a("s_barrier")
    a("s_cmp_lg_u32 s7, 0")
    a("s_cbranch_scc1 L_done3")
    for w in range(4):
        a(f"ds_read_b128 v[{4+4*w}:{7+4*w}], v22 offset:{L_T3 + w*1024}")
    a("s_waitcnt lgkmcnt(0)")
    for i in range(4):
        a(f"v_add_f32 v{4+i}, v{4+i}, v{8+i}"); a(f"v_add_f32 v{12+i}, v{12+i}, v{16+i}")
    for i in range(4): a(f"v_add_f32 v{4+i}, v{4+i}, v{12+i}")
    for r in (4, 8):
        for i in range(4): a(f"v_add_f32_dpp v{4+i}, v{4+i}, v{4+i} row_ror:{r} row_mask:0xf bank_mask:0xf")
    def rnd4():
        a("v_cvt_pk_bf16_f32 v12, v4, v5"); a("v_cvt_pk_bf16_f32 v13, v6, v7")
        a("v_lshlrev_b32 v4, 16, v12"); a("v_and_b32 v5, 0xffff0000, v12"); a("v_lshlrev_b32 v6, 16, v13"); a("v_and_b32 v7, 0xffff0000, v13")
    rnd4()
    for i in range(4): a(f"v_mul_f32 v{4+i}, v{4+i}, v{224+i}")
    rnd4()
    for i in range(4): a(f"v_add_f32 v{4+i}, v{4+i}, v{228+i}")
    a("v_cvt_pk_bf16_f32 v12, v4, v5"); a("v_cvt_pk_bf16_f32 v13, v6, v7")
    a("v_lshlrev_b32 v2, 10, v1")
    a("v_lshl_add_u32 v2, v30, 3, v2")
    a("s_lshl_b32 s10, s13, 5")
    a("s_mov_b32 exec_lo, 0x000f000f"); a("s_mov_b32 exec_hi, 0x000f000f")
    a(f"buffer_store_dwordx2 v[12:13], v2, {sa}, s10 offen")
    a("s_cmp_lg_u32 s13, 0")
    a("s_cbranch_scc1 L_done3")
    a("s_mov_b64 exec, 1")
    a("v_mov_b32 v2, 0"); a("v_mov_b32 v3, s56")
    a(f"buffer_store_dword v3, v2, {sw}, 0 offen sc1")
    a("L_done3:")
    ts(10)
    fin()
    if debug:
        a("L_fin:")
        a("s_mov_b64 exec, 1")
        srd(SW, P_WS, WS_END)
        a("s_lshl_b32 s10, s2, 3")
        a("s_add_u32 s10, s10, s3")
        a("s_lshl_b32 s10, s10, 6")
        a(f"s_add_u32 s10, s10, {WS_TS}")
        a("v_mov_b32 v2, 0")
        for k in range(12):
            a(f"v_mov_b32 v3, s{72+2*k}")
            a(f"buffer_store_dword v3, v2, {sw}, s10 offen offset:{4*k}")
        a("s_getreg_b32 s11, hwreg(HW_REG_XCC_ID)")
        a("v_mov_b32 v3, s11")
        a(f"buffer_store_dword v3, v2, {sw}, s10 offen offset:60")
    a("L_exit:")
    a("s_endpgm")
    body = a.finish()
    txt = HEADER + f"; @launch grid=(256,1,1) block=(512,1,1) lds={L_END}\n"
    txt += f""".amdgcn_target "amdgcn-amd-amdhsa--gfx950"
.text
.globl {KN}
.p2align 8
.type {KN},@function
{KN}:
{body}.section .rodata,"a"
.p2align 6
.amdhsa_kernel {KN}
  .amdhsa_next_free_vgpr 256
  .amdhsa_next_free_sgpr 102
  .amdhsa_accum_offset 256
  .amdhsa_group_segment_fixed_size 0
  .amdhsa_kernarg_size 112
  .amdhsa_user_sgpr_count 2
  .amdhsa_user_sgpr_kernarg_segment_ptr 1
  .amdhsa_system_sgpr_workgroup_id_x 1
  .amdhsa_float_denorm_mode_32 3
.end_amdhsa_kernel
"""
    return txt

if __name__ == "__main__":
    out = sys.argv[1] if len(sys.argv) > 1 else "adaLN_cond__gqa_block_cached__glu_gated_geglu__decode.s"
    kw = {}
    for arg in sys.argv[2:]:
        k, v = arg.split("=")
        kw[k] = v if k == "wpol" else int(v)
    open(out, "w").write(gen(**kw))
    print("wrote", out)
```

```python
import sys, math, struct
from asmlib import Asm

KN = "adaLN_cond__gqa_block_cached__glu_gated_geglu__decode_kernel"
HEADER = open("adaLN_cond__gqa_block_cached__glu_gated_geglu__decode.s.ref").read().split("; Override launch")[0]

WS_Q = 0x30000
WS_EPOCH, WS_MG, WS_ML, WS_X1, WS_Y, WS_Y2, WS_TS, WS_END = 0, 0x1000, 0x10000, 0x20000, 0x40000, 0xC0000, 0x180000, 0x200000
MG_B = 12288
L_QP, L_P, L_ML, L_CNT, L_F, L_OR, L_MODP, L_H1, L_H2, L_HH, L_STG, L_END = 0, 2048, 10496, 10560, 10592, 10752, 13056, 17152, 18176, 23360, 32768, 163840
L_Q = 23680
OR_STRIDE, H2_STRIDE = 272, 1232
XA_B, WS_C1, WS_C2 = 2816, 0x22C00, 0x24000
PAR_B = 11520
LOG2E = 0x3fb8aa3b
SCALE = 0x3db504f3
SPIN = 1 << 17
ARRIVE = 256 + 32
T2_LO, T1_LO, MOD_LO = 192, 128, 128

def f2u(x):
    return struct.unpack("<I", struct.pack("<f", x))[0]

def gen(D=8, DW=16, DWO=4, NL=32, debug=False, wpol="", qpol="", hmap=1, warm=1, nowo=0, nowq=0, noffn=0, prio=0, hold=0, D2=12, N1=5, N1F=4, N1R=7, N1M=7, DWR=8, DF_=4, fprio=0, pf=0, P1=1, P2=1, P3=1, PD=2, S3=40, SL1=0, SL3=0, Y2S=8192, HD1=0, HM2=8, RD1=0, RD2=0):
    a = Asm()
    def ts(k):
        if debug:
            a(f"s_memrealtime s[{72+2*k}:{73+2*k}]")
            a("s_waitcnt lgkmcnt(0)")
    def srd(base, ptr, size):
        a(f"s_mov_b32 s{base}, s{ptr}"); a(f"s_mov_b32 s{base+1}, s{ptr+1}")
        a(f"s_mov_b32 s{base+2}, {size}"); a(f"s_mov_b32 s{base+3}, 0x20000")
    def mask64(s, lo):
        a(f"s_mov_b32 s{s}, {lo:#x}"); a(f"s_mov_b32 s{s+1}, {lo:#x}")
    def execm(lo):
        a(f"s_mov_b32 exec_lo, {lo:#x}"); a(f"s_mov_b32 exec_hi, {lo:#x}")
    def bf16r(v):
        a(f"v_cvt_pk_bf16_f32 v{v}, v{v}, v{v}")
        a(f"v_and_b32 v{v}, 0xffff0000, v{v}")
    def rndn(r, n, t):
        for i in range(n // 2): a(f"v_cvt_pk_bf16_f32 v{t+i}, v{r+2*i}, v{r+2*i+1}")
        for i in range(n // 2):
            a(f"v_lshlrev_b32 v{r+2*i}, 16, v{t+i}"); a(f"v_and_b32 v{r+2*i+1}, 0xffff0000, v{t+i}")
    def allreduce(op, v, t):
        for r in (1, 2, 4, 8):
            a(f"{op}_dpp v{v}, v{v}, v{v} row_ror:{r} row_mask:0xf bank_mask:0xf")
        for sw_ in ("v_permlane16_swap_b32", "v_permlane32_swap_b32"):
            a(f"v_mov_b32 v{t}, v{v}")
            a(f"{sw_} v{t}, v{v}")
            a(f"{op} v{v}, v{v}, v{t}")
    def spin_tail(cnt, label):
        a(f"s_sub_u32 s{cnt}, s{cnt}, 1")
        a(f"s_cmp_lg_u32 s{cnt}, 0")
        a(f"s_cbranch_scc1 {label}")
    def lds_wait(off, val, tag, sleep=4):
        a("v_mov_b32 v4, 0")
        a(f"s_mov_b32 s15, {SPIN}")
        a(f"L_{tag}:")
        a(f"ds_read_b32 v5, v4 offset:{off}")
        a("s_waitcnt lgkmcnt(0)")
        a(f"v_cmp_eq_u32 vcc, {val}, v5")
        a(f"s_cbranch_vccnz L_{tag}ok")
        a(f"s_sleep {sleep}")
        spin_tail(15, f"L_{tag}")
        a(f"L_{tag}ok:")
    def make_tag():
        a("s_add_u32 s10, s56, 1")
        a("s_and_b32 s10, s10, 0xff")
        a("s_mul_i32 s56, s56, 1664525")
        a("s_add_u32 s56, s56, 1013904223")
        a("s_andn2_b32 s56, s56, 0xff")
        a("s_or_b32 s56, s56, s10")
    def fin():
        a("s_branch L_fin" if debug else "s_endpgm")
    def ln_stats(x0, t0, vm, vs, tmp):
        a(f"v_add_f32 v{t0}, v{x0}, v{x0+1}"); a(f"v_add_f32 v{t0+1}, v{x0+2}, v{x0+3}")
        a(f"v_add_f32 v{t0+2}, v{x0+4}, v{x0+5}"); a(f"v_add_f32 v{t0+3}, v{x0+6}, v{x0+7}")
        a(f"v_add_f32 v{t0}, v{t0}, v{t0+1}"); a(f"v_add_f32 v{t0+2}, v{t0+2}, v{t0+3}")
        a(f"v_add_f32 v{vm}, v{t0}, v{t0+2}")
        allreduce("v_add_f32", vm, tmp)
        a(f"v_mul_f32 v{vm}, {f2u(1/512):#x}, v{vm}")
        for i in range(8): a(f"v_sub_f32 v{t0+i}, v{x0+i}, v{vm}")
        a(f"v_mul_f32 v{vs}, v{t0}, v{t0}"); a(f"v_mul_f32 v{tmp}, v{t0+1}, v{t0+1}")
        for i in (2, 4, 6):
            a(f"v_fmac_f32 v{vs}, v{t0+i}, v{t0+i}"); a(f"v_fmac_f32 v{tmp}, v{t0+i+1}, v{t0+i+1}")
        a(f"v_add_f32 v{vs}, v{vs}, v{tmp}")
        allreduce("v_add_f32", vs, tmp)
        bf16r(vm)
        a(f"v_mul_f32 v{vs}, {f2u(1/512):#x}, v{vs}")
        bf16r(vs)
        a(f"v_add_f32 v{vs}, {f2u(1e-5):#x}, v{vs}")
        bf16r(vs)
        a(f"v_sqrt_f32 v{vs}, v{vs}")
        bf16r(vs)
    WP = (" " + wpol) if wpol else ""
    QPOL = (" " + qpol) if qpol else ""
    P_X, P_K, P_V, P_WQ, P_WO, P_WG, P_WU, P_WD, P_C, P_WM, P_OUT, P_DBG, P_WS = 16, 18, 20, 22, 24, 28, 30, 32, 34, 36, 38, 40, 42
    SA, SB, SW = 44, 48, 52
    sa, sb_, sw = "s[44:47]", "s[48:51]", "s[52:55]"

    a("L_entry:")
    a("s_cmp_ge_u32 s2, 256")
    a("s_cbranch_scc1 L_exit")
    a("s_load_dwordx16 s[16:31], s[0:1], 0")
    a("s_load_dwordx8 s[32:39], s[0:1], 64")
    a("s_load_dwordx4 s[40:43], s[0:1], 96")
    if debug:
        for k in range(12): a(f"s_mov_b32 s{72+2*k}, 0")
    if hold: a("s_memrealtime s[96:97]")
    a("v_lshrrev_b32 v1, 6, v0")
    a("v_and_b32 v0, 63, v0")
    a("v_readfirstlane_b32 s3, v1")
    a("s_and_b32 s8, s2, 7")
    a("s_lshr_b32 s9, s2, 3")
    a("s_lshr_b32 s4, s9, 3")
    if hmap == 0:
        a("s_lshl_b32 s4, s4, 3")
        a("s_add_u32 s4, s4, s8")
    else:
        a("s_lshl_b32 s10, s8, 2")
        a("s_add_u32 s4, s4, s10")
    a("s_bfe_u32 s5, s9, 0x20001")
    a("s_and_b32 s6, s9, 1")
    a("s_lshr_b32 s100, s2, 4")
    a("s_lshl_b32 s100, s100, 3")
    a("s_add_u32 s100, s100, s8")
    a("s_sub_u32 s101, s100, 64")
    a("s_cmp_eq_u32 s6, 1")
    a("s_cselect_b32 s101, s101, 64")
    a("v_lshrrev_b32 v30, 4, v0")
    a("v_and_b32 v31, 15, v0")
    a("s_cmp_ge_u32 s3, 4")
    a("s_cbranch_scc1 L_service")

    a("v_lshrrev_b32 v3, 2, v31")
    a("v_and_b32 v4, 3, v31")
    a("v_lshlrev_b32 v1, 8, v3")
    a("v_lshl_add_u32 v1, v4, 4, v1")
    a("v_lshl_add_u32 v1, v30, 6, v1")
    a("v_lshlrev_b32 v2, 4, v0")
    a("s_lshl_b32 s57, s5, 5")
    a("s_add_u32 s57, s57, s4")
    a("s_lshl_b32 s57, s57, 20")
    a("s_lshl_b32 s10, s6, 19")
    a("s_add_u32 s57, s57, s10")
    a("s_lshl_b32 s10, s3, 12")
    a("s_add_u32 s57, s57, s10")
    a("s_mov_b32 s58, s57")
    a("s_waitcnt lgkmcnt(0)")
    ts(0)
    srd(SA, P_K, 128 << 20); srd(SB, P_V, 128 << 20)
    NSLOT = 48
    PRE = NSLOT - 4
    def in_lds(q): return PRE <= q < PRE + NL
    regq = [q for q in range(128) if not in_lds(q)]
    rslot = {q: i % NSLOT for i, q in enumerate(regq)}
    vbase = (rslot[regq[-1]] + 1) % NSLOT
    def slot(q):
        return 64 + 4 * (rslot[q] if q < 128 else (vbase + (q - 128) % 16) % NSLOT)
    def issue(q, wait=True):
        if wait: a(f"s_waitcnt vmcnt({D-1})")
        r = q & 3
        off = f" offset:{r*1024}" if r else ""
        if in_lds(q):
            if r == 0:
                a(f"s_add_u32 m0, s14, {(q-PRE)*1024}")
            a(f"buffer_load_dwordx4 v1, {sa}, s57 offen{off} nt lds")
            if r == 3: a("s_add_u32 s57, s57, 16384")
            return
        s = slot(q)
        if q < 128:
            a(f"buffer_load_dwordx4 v[{s}:{s+3}], v1, {sa}, s57 offen{off} nt")
            if r == 3: a("s_add_u32 s57, s57, 16384")
        else:
            a(f"buffer_load_dwordx4 v[{s}:{s+3}], v2, {sb_}, s58 offen{off} nt")
            if r == 3: a("s_add_u32 s58, s58, 16384")
    for q in range(D): issue(q, wait=False)
    a("s_load_dword s56, s[42:43], 0")
    for j in range(4): mask64(60 + 2 * j, (0x000F000F << (4 * j)))
    mask64(68, 0xAAAAAAAA); mask64(70, 0xCCCCCCCC)
    a("s_lshl_b32 s14, s3, 15")
    a(f"s_add_u32 s14, s14, {L_STG}")
    a("v_add_u32 v59, s14, v2")
    a("v_lshlrev_b32 v29, 4, v4")
    a("v_lshl_add_u32 v29, v30, 6, v29")
    a("s_lshl_b32 s10, s3, 11")
    a(f"s_add_u32 s10, s10, {L_P}")
    a("v_lshlrev_b32 v28, 6, v4")
    a("v_lshl_add_u32 v28, v30, 4, v28")
    a("v_lshl_add_u32 v28, v3, 2, v28")
    a("v_add_u32 v56, s10, v28")
    a("v_lshl_add_u32 v3, v30, 4, s10")
    a("v_and_b32 v8, 1, v31")
    a("v_cmp_eq_u32 vcc, 1, v8")
    a("v_mov_b32 v9, 0xffff")
    a("v_mov_b32 v10, 0xffff0000")
    a("v_cndmask_b32 v9, v9, v10, vcc")
    a("v_bfe_u32 v8, v31, 1, 2")
    for w in range(4):
        a(f"v_cmp_eq_u32 vcc, {w}, v8")
        a(f"v_cndmask_b32 v{4+w}, 0, v9, vcc")
    a("v_mov_b32 v57, 0xff800000")
    a("s_waitcnt lgkmcnt(0)")
    make_tag()
    a("s_barrier")
    for q in range(D, PRE + NL): issue(q)
    ts(1)
    a("v_mov_b32 v8, 0")
    a(f"s_mov_b32 s15, {SPIN}")
    a("L_qw:")
    a(f"ds_read_b32 v9, v8 offset:{L_CNT+20}")
    a(f"ds_read_b128 v[24:27], v29 offset:{L_Q}")
    a("s_waitcnt lgkmcnt(0)")
    a("v_cmp_eq_u32 vcc, 1, v9")
    a("s_cbranch_vccnz L_qok")
    a("s_sleep 2")
    spin_tail(15, "L_qw")
    a("L_qok:")
    ts(2)
    issue(PRE + NL)
    for j in range(4):
        for i in range(4):
            a(f"v_cndmask_b32 v{32+4*j+i}, 0, v{24+i}, s[{60+2*j}:{61+2*j}]")
    a(f"s_mov_b32 s59, {SCALE:#x}")
    LT = 64 + 4 * 24
    def consume(q):
        t, j = q >> 2, q & 3
        acc = 8 + 4 * (t & 3)
        if in_lds(q):
            if j == 0:
                for jj in range(4):
                    a(f"ds_read_b128 v[{LT+4*jj}:{LT+4*jj+3}], v59 offset:{(q-PRE+jj)*1024}")
            a(f"s_waitcnt lgkmcnt({3-j})")
            s = LT + 4 * j
        else:
            s = slot(q)
        c = "0" if j == 0 else f"v[{acc}:{acc+3}]"
        a(f"v_mfma_f32_16x16x32_bf16 v[{acc}:{acc+3}], v[{s}:{s+3}], v[{32+4*j}:{35+4*j}], {c}")
        if (q & 15) == 15:
            u = q >> 4
            for i in range(4):
                a(f"v_mov_b32_dpp v{24+i}, v{8+4*i} quad_perm:[0,0,0,0] row_mask:0xf bank_mask:0xf")
            for r in (1, 2, 3):
                for i in range(4):
                    a(f"v_add_f32_dpp v{24+i}, v{8+4*i+r}, v{24+i} quad_perm:[{r},{r},{r},{r}] row_mask:0xf bank_mask:0xf")
            a("v_cndmask_b32 v24, v24, v25, s[68:69]")
            a("v_cndmask_b32 v26, v26, v27, s[68:69]")
            a("v_cndmask_b32 v24, v24, v26, s[70:71]")
            bf16r(24)
            a("v_mul_f32 v24, s59, v24")
            a("v_cvt_pk_bf16_f32 v24, v24, v24")
            a(f"v_and_b32 v{48+u}, 0xffff0000, v24")
            a(f"v_max_f32 v57, v57, v{48+u}")
    issued, consumed = PRE + NL + 1, 0
    live = {slot(q): q for q in range(issued) if not in_lds(q)}
    while consumed < 128:
        landed = issued - D
        n = 0
        while consumed < min(landed, 128) and n < 12:
            if in_lds(consumed):
                if (consumed | 3) >= landed: break
                for jj in range(4): assert live.get(LT + 4 * jj, -1) < consumed, "LDS staging slot busy"
            consume(consumed); consumed += 1; n += 1
            if consumed == PRE + NL:
                a("v_mov_b32 v60, 0"); a("v_mov_b32 v61, 1")
                a("s_mov_b64 exec, 1")
                a(f"ds_add_u32 v60, v61 offset:{L_CNT+12}")
                a("s_mov_b64 exec, -1")
        if issued < 128 + D:
            assert live.get(slot(issued), -1) < consumed, "ring slot busy"
            if consumed < PRE + NL: assert not (LT <= slot(issued) < LT + 16)
            live[slot(issued)] = issued
            issue(issued); issued += 1
    ts(3)
    allreduce("v_max_f32", 57, 24)
    a(f"s_mov_b32 s59, {LOG2E:#x}")
    a("v_mul_f32 v25, s59, v57")
    for u in range(8):
        a(f"v_fma_f32 v{48+u}, v{48+u}, s59, -v25")
    for u in range(8):
        a(f"v_exp_f32 v{48+u}, v{48+u}")
    for u in range(8):
        a(f"v_cvt_pk_bf16_f32 v{8+u}, v{48+u}, v{48+u}")
        a(f"ds_write_b32 v56, v{8+u} offset:{u*256}")
    a("ds_read_b128 v[12:15], v3")
    a("ds_read_b128 v[16:19], v3 offset:64")
    a("v_add_f32 v48, v48, v49"); a("v_add_f32 v50, v50, v51"); a("v_add_f32 v52, v52, v53"); a("v_add_f32 v54, v54, v55")
    a("v_add_f32 v48, v48, v50"); a("v_add_f32 v52, v52, v54"); a("v_add_f32 v58, v48, v52")
    allreduce("v_add_f32", 58, 24)
    a("v_mov_b32 v26, v57"); a("v_mov_b32 v27, v58")
    a("s_lshl_b32 s10, s3, 3")
    a("v_mov_b32 v24, s10")
    a("v_mov_b32 v25, 1")
    a(f"ds_write_b64 v24, v[26:27] offset:{L_ML}")
    a("v_mov_b32 v24, 0")
    a("s_mov_b64 exec, 1")
    a(f"ds_add_u32 v24, v25 offset:{L_CNT+4}")
    a("s_mov_b64 exec, -1")
    a("s_waitcnt lgkmcnt(0)")
    for j in range(4):
        for w in range(4):
            a(f"v_and_b32 v{32+4*j+w}, v{12+j}, v{4+w}")
    for i in range(4): a(f"v_mov_b32 v{8+i}, 0")
    a("v_add_u32 v3, 128, v3")
    ts(4)
    def vstep(v, rel, la, waitn, build):
        t, j = v >> 2, v & 3
        ab, ob = 32 + 16 * (t & 1), 32 + 16 * ((t + 1) & 1)
        ppn, ppf = 12 + 4 * ((t + 1) & 1), 12 + 4 * (t & 1)
        s = slot(128 + v)
        if j == 0 and build:
            a("s_waitcnt lgkmcnt(0)")
            a(f"ds_read_b128 v[{ppf}:{ppf+3}], v3 offset:{rel*64}")
        a(f"s_waitcnt vmcnt({waitn})")
        a(f"v_mfma_f32_16x16x32_bf16 v[8:11], v[{ab+4*j}:{ab+4*j+3}], v[{s}:{s+3}], v[8:11]")
        if la: issue(128 + v + la, wait=False)
        if build:
            for w in range(4):
                a(f"v_and_b32 v{ob+4*j+w}, v{ppn+j}, v{4+w}")
    assert D <= D2 <= 16 and D % 4 == 0 and D2 % 4 == 0
    a("s_cmp_lt_u32 s8, 6")
    a(f"s_cselect_b32 s11, {N1M}, {N1R}")
    a("s_cmp_lt_u32 s2, 128")
    a(f"s_cselect_b32 s11, s11, {N1R}")
    a("s_cmp_lt_u32 s101, 43")
    a(f"s_cselect_b32 s11, {N1F}, s11")
    a("s_cmp_eq_u32 s6, 0")
    a(f"s_cselect_b32 s11, {N1}, s11")
    a("s_sub_u32 s12, 7, s11")
    a("s_cmp_eq_u32 s11, 0")
    a("s_cbranch_scc1 L_vmid")
    a("L_vloop:")
    for v in range(16): vstep(v, v >> 2, D, D - 1, True)
    a("v_add_u32 v3, 256, v3")
    spin_tail(11, "L_vloop")
    a("L_vmid:")
    for v in range(D, D2): issue(128 + v, wait=False)
    a("s_cmp_eq_u32 s12, 0")
    a("s_cbranch_scc1 L_vend")
    a("L_vloop2:")
    for v in range(16): vstep(v, v >> 2, D2, D2 - 1, True)
    a("v_add_u32 v3, 256, v3")
    spin_tail(12, "L_vloop2")
    a("L_vend:")
    base = 112
    a("s_lshl_b32 s10, s3, 2")
    a("v_mov_b32 v24, s10")
    a(f"s_mov_b32 s11, {SPIN}")
    a("L_fwait:")
    a(f"ds_read_b32 v25, v24 offset:{L_F}")
    a("s_waitcnt lgkmcnt(0)")
    a("v_cmp_ne_u32 vcc, -1, v25")
    a("s_cbranch_vccnz L_fok")
    a("s_sleep 2")
    spin_tail(11, "L_fwait")
    a("L_fok:")
    a("v_and_b32 v26, 1, v30")
    a("v_lshlrev_b32 v26, 3, v26")
    a("v_lshl_add_u32 v26, v31, 4, v26")
    a(f"s_mul_i32 s10, s3, {OR_STRIDE}")
    a("v_add_u32 v26, s10, v26")
    vs = sorted(slot(128 + i) for i in range(16))
    LB = 64 if vs[0] >= 64 + 72 else vs[-1] + 4
    assert LB + 72 <= 256 and all(not (LB <= x < LB + 72) for x in vs), (LB, vs)
    a("s_cmp_ge_u32 s101, 43")
    a("s_cbranch_scc1 L_noln2pre")
    a(f"v_mov_b32 v{LB+60}, 0")
    a(f"s_mov_b32 s11, {SPIN}")
    a("L_parw:")
    a(f"ds_read_b32 v{LB+61}, v{LB+60} offset:{L_CNT+28}")
    a("s_waitcnt lgkmcnt(0)")
    a(f"v_cmp_eq_u32 vcc, 4, v{LB+61}")
    a("s_cbranch_vccnz L_parok")
    a("s_sleep 2")
    spin_tail(11, "L_parw")
    a("L_parok:")
    PR = lambda p, i: LB + 12 * p + 4 * i
    AC = lambda i: 8 + 4 * i
    DD = lambda i: 32 + 4 * i
    a(f"v_mul_u32_u24 v{LB+60}, 12, v0")
    a(f"s_mul_i32 s10, s3, {PAR_B}")
    a(f"s_add_u32 s10, s10, {L_STG}")
    a(f"v_add_u32 v{LB+60}, s10, v{LB+60}")
    for p in range(5):
        for i in range(3):
            for k in range(3):
                a(f"ds_read_b32 v{PR(p,i)+k}, v{LB+60} offset:{p*2304 + i*768 + k*4}")
        a(f"s_waitcnt lgkmcnt(0)")
    a(f"v_lshlrev_b32 v{LB+61}, 4, v0")
    a(f"v_cmp_gt_u32 vcc, 48, v0")
    a(f"v_mov_b32 v{LB+62}, 0x7ffffff0")
    a(f"v_mov_b32 v{LB+63}, 64.0")
    a(f"v_cndmask_b32 v{LB+62}, v{LB+62}, v{LB+61}, vcc")
    a(f"v_cndmask_b32_e64 v{LB+63}, v{LB+63}, 0, vcc")
    a(f"s_mul_i32 s11, s3, {H2_STRIDE}")
    a(f"s_add_u32 s11, s11, {L_H2}")
    for i in range(3):
        a(f"v_add_u32 v{LB+67}, {64*i}, v0")
        a(f"v_mul_u32_u24 v{LB+68}, 1490, v{LB+67}")
        a(f"v_lshrrev_b32 v{LB+68}, 16, v{LB+68}")
        a(f"v_mul_u32_u24 v{LB+64+i}, 6, v{LB+67}")
        a(f"v_lshl_add_u32 v{LB+64+i}, v{LB+68}, 3, v{LB+64+i}")
        a(f"v_add_u32 v{LB+64+i}, s11, v{LB+64+i}")
    a(f"s_mul_i32 s60, s3, {XA_B}")
    a(f"s_add_u32 s60, s60, {WS_X1}")
    a(f"s_lshl_b32 s67, s3, 9")
    a(f"s_and_b32 s10, s101, 3")
    a(f"s_lshl_b32 s10, s10, 7")
    a(f"s_add_u32 s67, s67, s10")
    a(f"s_add_u32 s67, s67, {WS_C1}")
    a("L_noln2pre:")
    for v in range(base, 128):
        ld = v + D2 < 128
        vstep(v, (v - base) >> 2, D2 if ld else 0, D2 - 1 if ld else 127 - v, v < 124)
    ts(5)
    for i in range(4): a(f"v_mul_f32 v{8+i}, v{8+i}, v25")
    a("v_cvt_pk_bf16_f32 v12, v8, v9")
    a("v_cvt_pk_bf16_f32 v13, v10, v11")
    a(f"ds_write_b64 v26, v[12:13] offset:{L_OR}")
    a("v_lshlrev_b32 v14, 16, v12"); a("v_and_b32 v15, 0xffff0000, v12")
    a("v_lshlrev_b32 v16, 16, v13"); a("v_and_b32 v17, 0xffff0000, v13")
    for i in range(4): a(f"v_sub_f32 v{8+i}, v{8+i}, v{14+i}")
    a("v_cvt_pk_bf16_f32 v18, v8, v9")
    a("v_cvt_pk_bf16_f32 v19, v10, v11")
    a(f"ds_write_b64 v26, v[18:19] offset:{L_OR + 4*OR_STRIDE}")
    a("s_waitcnt lgkmcnt(0)")
    a("s_barrier")
    srd(SW, P_WS, WS_END)
    a("s_cmp_lg_u32 s3, 1")
    a("s_cbranch_scc1 L_nohint1")
    if HD1: a(f"s_sleep {HD1}")
    a("v_lshlrev_b32 v1, 7, v0")
    a("v_mov_b32 v2, 1")
    a("s_lshl_b32 s10, s5, 9")
    a(f"s_add_u32 s10, s10, {WS_C1}")
    a("s_mov_b64 exec, 15")
    a(f"buffer_atomic_add v2, v1, {sw}, s10 offen sc1")
    a("s_mov_b64 exec, -1")
    a("L_nohint1:")
    a("s_cmp_lt_u32 s101, 43")
    a("s_cbranch_scc1 L_ln2")
    a("s_add_u32 s10, s3, s6")
    a("s_cmp_lg_u32 s10, 0")
    a("s_cbranch_scc1 L_done")
    def hint_wait(tag, soff, target, delay, cmp="le"):
        a("v_mov_b32 v50, 0")
        a(f"s_mov_b32 s15, {SPIN}")
        a(f"L_{tag}:")
        a(f"buffer_load_dword v51, v50, {sw}, {soff} offen sc1")
        a("s_waitcnt vmcnt(0)")
        a(f"v_cmp_{cmp}_u32 vcc, {target}, v51")
        a(f"s_cbranch_vccnz L_{tag}ok")
        spin_tail(15, f"L_{tag}")
        a(f"L_{tag}ok:")
        if debug: a("v_readfirstlane_b32 s92, v51")
        if delay: a(f"s_sleep {delay}")
    srd(SA, P_X, 4096)
    srd(SB, P_OUT, 4096)
    a("v_lshrrev_b32 v29, 2, v0")
    a("v_and_b32 v2, 3, v0")
    a("v_lshrrev_b32 v3, 1, v30")
    a("v_and_b32 v4, 1, v30")
    a("v_lshl_add_u32 v46, v4, 1, v3")
    a("v_lshlrev_b32 v41, 4, v3")
    a("s_lshr_b32 s14, s100, 4"); a("s_lshl_b32 s14, s14, 6")
    a("s_and_b32 s15, s100, 3"); a("s_lshl_b32 s15, s15, 4"); a("s_add_u32 s14, s14, s15")
    a("s_and_b32 s15, s100, 12"); a("s_add_u32 s14, s14, s15")
    a("v_add_u32 v47, s14, v46")
    a("v_lshrrev_b32 v48, 1, v47")
    a("v_lshlrev_b32 v48, 3, v48")
    a(f"v_mul_u32_u24 v49, {MG_B}, v2")
    a("v_add_u32 v48, v48, v49")
    a(f"s_mov_b32 s66, {WS_MG + 5*2048}")
    a(f"s_mov_b32 s10, {WS_MG + 2*2048}")
    a("v_lshlrev_b32 v3, 10, v2")
    a("v_lshl_add_u32 v3, v47, 1, v3")
    a(f"buffer_load_ushort v7, v3, {sa}, 0 offen")
    a(f"s_mov_b32 s15, {SPIN}")
    a("L_gchk:")
    a(f"buffer_load_dwordx2 v[42:43], v48, {sw}, s10 offen sc1")
    a(f"buffer_load_dwordx2 v[44:45], v48, {sw}, s66 offen sc1")
    a("s_waitcnt vmcnt(0)")
    a("v_bitop3_b32 v32, v43, v45, s56 bitop3:0x7e")
    a("v_cmp_ne_u32 vcc, 0, v32")
    a("s_cbranch_vccz L_gok")
    spin_tail(15, "L_gchk")
    a("L_gok:")
    a("v_lshrrev_b32 v6, v41, v42")
    a("v_lshlrev_b32 v6, 16, v6")
    a("v_lshlrev_b32 v7, 16, v7")
    a("v_lshrrev_b32 v28, v41, v44")
    a("v_lshlrev_b32 v28, 16, v28")
    a("v_mov_b32 v40, 0xff")
    a("v_and_b32 v4, 127, v47")
    a("v_mul_u32_u24 v5, 0x5556, v4")
    a("v_lshrrev_b32 v5, 16, v5")
    a("v_add_lshl_u32 v4, v4, v5, 2")
    a(f"v_mul_u32_u24 v5, {XA_B}, v2")
    a("v_add_u32 v4, v4, v5")
    a("s_lshr_b32 s63, s100, 5")
    a("s_mul_i32 s63, s63, 704")
    a(f"s_add_u32 s63, s63, {WS_X1}")
    a(f"v_mul_u32_u24 v1, {Y2S}, v29")
    a("v_lshl_add_u32 v1, v2, 4, v1")
    a("v_cmp_gt_u32 vcc, 11, v29")
    a("v_mov_b32 v5, 0x7ffffff0")
    a("v_cndmask_b32 v5, v5, v1, vcc")
    a("s_mov_b64 s[64:65], vcc")
    a("s_lshl_b32 s10, s100, 6")
    a(f"s_add_u32 s60, s10, {WS_Y2}")
    a(f"s_add_u32 s61, s60, {16*Y2S}")
    a(f"s_add_u32 s62, s60, {32*Y2S}")
    a("s_mul_i32 s67, s100, 0x5f5")
    a("s_lshr_b32 s67, s67, 16")
    a("s_mul_i32 s67, s67, 43")
    a("s_sub_u32 s67, s100, s67")
    a("s_lshl_b32 s67, s67, 7")
    a(f"s_add_u32 s67, s67, {WS_C2}")
    ts(6)
    hint_wait("h2w", "s67", "s56", RD2, "eq")
    ts(7)
    a(f"buffer_load_dword v20, v4, {sw}, s63 offen sc1")
    a(f"s_mov_b32 s15, {SPIN}")
    a("L_t3poll:")
    for u, o in enumerate((1, 1, 5)):
        a(f"buffer_load_dwordx4 v[{8+4*u}:{11+4*u}], v{o}, {sw}, s{60+u} offen sc1")
    a("s_waitcnt vmcnt(3)")
    a("v_cvt_pk_bf16_f32 v21, v20, v20")
    a("v_and_b32 v21, 0xffff0000, v21")
    a("v_mul_f32 v21, v21, v6")
    bf16r(21)
    a("v_add_f32 v21, v21, v7")
    bf16r(21)
    a("s_waitcnt vmcnt(0)")
    for i in range(6):
        a(f"v_bitop3_b32 v{32+i}, v{8+2*i}, v{9+2*i}, s56 bitop3:0x7e")
    a("v_or_b32 v36, v36, v37"); a("v_or3_b32 v32, v32, v33, v34")
    a("v_cndmask_b32 v36, 0, v36, s[64:65]")
    a("v_or_b32 v35, v35, v36")
    a("v_bitop3_b32 v32, v32, v35, v40 bitop3:0xa8")
    a("v_cmp_ne_u32 vcc, 0, v32")
    a("s_cbranch_vccz L_t3ok")
    a("s_mov_b64 exec, vcc")
    spin_tail(15, "L_t3poll")
    a("L_t3ok:")
    a("s_mov_b64 exec, -1")
    if debug: a(f"s_sub_u32 s94, {SPIN+1}, s15")
    ts(8)
    a("v_pk_add_f32 v[24:25], v[8:9], v[12:13]"); a("v_pk_add_f32 v[26:27], v[10:11], v[14:15]")
    a("v_pk_add_f32 v[24:25], v[24:25], v[16:17]"); a("v_pk_add_f32 v[26:27], v[26:27], v[18:19]")
    a("v_permlane32_swap_b32 v24, v25")
    a("v_permlane32_swap_b32 v26, v27")
    a("v_add_f32 v24, v24, v25")
    a("v_add_f32 v26, v26, v27")
    a("v_permlane16_swap_b32 v24, v26")
    a("v_add_f32 v24, v24, v26")
    a("v_add_f32_dpp v24, v24, v24 row_ror:4 row_mask:0xf bank_mask:0xf")
    a("v_add_f32_dpp v24, v24, v24 row_ror:8 row_mask:0xf bank_mask:0xf")
    bf16r(24)
    a("v_mul_f32 v24, v24, v28")
    bf16r(24)
    a("v_add_f32 v24, v24, v21")
    a("v_cvt_pk_bf16_f32 v24, v24, v24")
    execm(0x000f000f)
    a(f"buffer_store_short v24, v3, {sb_}, 0 offen")
    ts(9)
    if hold:
        a("s_cmp_lg_u32 s2, 128")
        a("s_cbranch_scc1 L_done")
        a("L_hold:")
        a("s_memrealtime s[98:99]")
        a("s_waitcnt lgkmcnt(0)")
        a("s_sub_u32 s98, s98, s96")
        a(f"s_cmp_lt_u32 s98, {hold*100}")
        a("s_cbranch_scc1 L_hold")
    if debug == 2:
        a("s_mov_b64 exec, 1")
        a("s_not_b32 s72, s72")
        a("v_mov_b32 v2, 0")
        for k in range(10):
            a(f"v_mov_b32 v3, s{72+2*k}")
            a(f"global_atomic_umax v2, v3, s[40:41] offset:{4*k}")
        a("s_not_b32 s82, s82")
        a("v_mov_b32 v3, s82")
        a("global_atomic_umax v2, v3, s[40:41] offset:40")
    a("L_done:")
    fin()
    a("L_ln2:")
    ts(6)
    hint_wait("h1w", "s67", 64, RD1)
    ts(7)
    a(f"s_mov_b32 s15, {SPIN}")
    a("L_xpoll:")
    a(f"buffer_load_dwordx4 v[8:11], v{LB+61}, {sw}, s60 offen sc1")
    a(f"buffer_load_dwordx4 v[12:15], v{LB+61}, {sw}, s60 offen offset:1024 sc1")
    a(f"buffer_load_dwordx4 v[16:19], v{LB+62}, {sw}, s60 offen offset:2048 sc1")
    a("s_waitcnt vmcnt(0)")
    a(f"v_max_f32 v20, v19, v{LB+63}")
    a("v_min3_f32 v20, v11, v15, v20")
    a("v_cmp_gt_f32 vcc, 64.0, v20")
    a("s_cbranch_vccz L_xok")
    a("s_mov_b64 exec, vcc")
    spin_tail(15, "L_xpoll")
    a("L_xok:")
    if debug == 3:
        a("v_cvt_u32_f32 v52, v20")
        a("s_bcnt1_i32_b64 s74, exec")
        a("v_readfirstlane_b32 s76, v52")
    a("s_mov_b64 exec, -1")
    if debug: a(f"s_sub_u32 s94, {SPIN+1}, s15")
    ts(8)
    def tri(op2, op1, d, x, y, z=None, sel=""):
        for i in range(3):
            def pr(f): return f"v[{f(i)}:{f(i)+1}]" if callable(f) else f"v[{f}:{f+1}]"
            a(f"{op2} {pr(d)}, {pr(x)}, {pr(y)}" + (f", {pr(z)}" if z is not None else "") + sel)
        for i in range(3):
            def sg_(f): return f"v{f(i)+2}" if callable(f) else f"v{f}"
            a(f"{op1} {sg_(d)}, {sg_(x)}, {sg_(y)}" + (f", {sg_(z)}" if z is not None else ""))
    tri("v_pk_fma_f32", "v_fma_f32", DD, lambda i: PR(0, i), AC, lambda i: PR(1, i))
    a(f"v_readfirstlane_b32 s61, v{DD(0)}")
    a("v_sub_f32 v22, 0, s61") if False else a("v_mul_f32 v22, -1.0, s61") if False else a("v_sub_f32_e64 v22, 0, s61")
    tri("v_pk_fma_f32", "v_fma_f32", DD, lambda i: PR(2, i), 22, DD, " op_sel_hi:[1,0,1]")
    a(f"v_pk_add_f32 v[24:25], v[{DD(0)}:{DD(0)+1}], v[{DD(1)}:{DD(1)+1}]")
    a(f"v_pk_mul_f32 v[26:27], v[{DD(0)}:{DD(0)+1}], v[{DD(0)}:{DD(0)+1}]")
    a(f"v_add_f32 v20, v{DD(0)+2}, v{DD(1)+2}")
    a(f"v_mul_f32 v21, v{DD(0)+2}, v{DD(0)+2}")
    a(f"v_pk_add_f32 v[24:25], v[24:25], v[{DD(2)}:{DD(2)+1}]")
    a(f"v_pk_fma_f32 v[26:27], v[{DD(1)}:{DD(1)+1}], v[{DD(1)}:{DD(1)+1}], v[26:27]")
    a(f"v_add_f32 v20, v20, v{DD(2)+2}")
    a(f"v_fmac_f32 v21, v{DD(1)+2}, v{DD(1)+2}")
    a(f"v_pk_fma_f32 v[26:27], v[{DD(2)}:{DD(2)+1}], v[{DD(2)}:{DD(2)+1}], v[26:27]")
    a(f"v_fmac_f32 v21, v{DD(2)+2}, v{DD(2)+2}")
    a("v_add_f32 v24, v24, v25")
    a("v_add_f32 v26, v26, v27")
    a("v_add_f32 v20, v20, v24")
    a("v_add_f32 v21, v21, v26")
    for r in (1, 2, 4, 8):
        for v in (20, 21): a(f"v_add_f32_dpp v{v}, v{v}, v{v} row_ror:{r} row_mask:0xf bank_mask:0xf")
    a("v_permlane16_swap_b32 v20, v21")
    a("v_add_f32 v20, v20, v21")
    a("v_mov_b32 v21, v20")
    a("v_permlane32_swap_b32 v21, v20")
    a("v_add_f32 v20, v20, v21")
    a(f"v_mul_f32 v20, {f2u(1/512):#x}, v20")
    a("v_readlane_b32 s62, v20, 0")
    a("v_readlane_b32 s63, v20, 16")
    a("v_mov_b32 v20, s62")
    a("v_mov_b32 v21, s63")
    a("v_fma_f32 v21, -v20, v20, v21")
    a("v_add_f32 v20, s61, v20")
    a("v_max_f32 v21, 0, v21")
    a("v_cvt_pk_bf16_f32 v22, v20, v21")
    a("v_lshlrev_b32 v20, 16, v22"); a("v_and_b32 v23, 0xffff0000, v22")
    a(f"v_add_f32 v23, {f2u(1e-5):#x}, v23")
    a("v_sub_f32 v20, s61, v20")
    bf16r(23)
    a("v_sqrt_f32 v23, v23")
    tri("v_pk_add_f32", "v_add_f32", DD, DD, 20, None, " op_sel_hi:[1,0]")
    bf16r(23)
    a("v_rcp_f32 v22, v23")
    tri("v_pk_mul_f32", "v_mul_f32", DD, DD, lambda i: PR(3, i))
    tri("v_pk_fma_f32", "v_fma_f32", DD, DD, 22, lambda i: PR(4, i), " op_sel_hi:[1,0,1]")
    for i in range(3):
        a(f"v_cvt_pk_bf16_f32 v{24+i}, v{DD(i)}, v{DD(i)+1}")
        a(f"v_cvt_pk_bf16_f32 v{44+i}, v{DD(i)+2}, v{DD(i)+2}")
    for i in range(3):
        a(f"ds_write_b16 v{LB+64+i}, v{24+i}")
        a(f"ds_write_b16_d16_hi v{LB+64+i}, v{24+i} offset:2")
        a(f"ds_write_b16 v{LB+64+i}, v{44+i} offset:4")
    a("s_waitcnt lgkmcnt(0)")
    a("s_barrier")
    ts(9)
    a("s_barrier")
    fin()

    RG = lambda i: 96 + 32 * i
    ACC = RG(4)
    def mod_loads():
        srd(SA, P_C, 4096)
        a("v_and_b32 v2, 3, v31")
        a("v_lshlrev_b32 v2, 10, v2")
        a("v_lshrrev_b32 v3, 2, v31")
        a("v_lshl_add_u32 v2, v3, 6, v2")
        a("v_lshl_add_u32 v2, v30, 4, v2")
        a("s_lshl_b32 s10, s7, 8")
        a(f"buffer_load_dwordx4 v[16:19], v2, {sa}, s10 offen")
        srd(SA, P_WM, 512 * 6144)
        a("v_mul_u32_u24 v2, 49152, v30")
        a("v_lshl_add_u32 v2, v31, 3, v2")
        a(f"s_mul_i32 s10, s7, {128*6144}")
        a("s_lshl_b32 s11, s13, 7")
        a("s_add_u32 s10, s10, s11")
        for ks in range(4):
            for e in range(8):
                r = 32 + ks * 16 + 2 * e
                a(f"buffer_load_dwordx2 v[{r}:{r+1}], v2, {sa}, s10 offen{WP}")
                a(f"s_add_u32 s10, s10, {6144 if e < 7 else 6144*25}")
    def mod_silu(T, younger=32):
        a(f"s_waitcnt vmcnt({younger})")
        hi, lo = -1.4426950216293335, -1.925963033500011e-08
        a(f"s_mov_b32 s59, {f2u(hi):#x}")
        a(f"s_mov_b32 s58, {f2u(lo):#x}")
        X, E, L_, R = T, T + 8, T + 16, T + 24
        for i in range(4):
            a(f"v_lshlrev_b32 v{X+2*i}, 16, v{16+i}"); a(f"v_and_b32 v{X+2*i+1}, 0xffff0000, v{16+i}")
        for i in range(8): a(f"v_mul_f32 v{E+i}, s59, v{X+i}")
        for i in range(8): a(f"v_fma_f32 v{L_+i}, v{X+i}, s59, -v{E+i}")
        for i in range(8): a(f"v_fmac_f32 v{L_+i}, s58, v{X+i}")
        for i in range(8): a(f"v_exp_f32 v{E+i}, v{E+i}")
        for i in range(8): a(f"v_mul_f32 v{L_+i}, {f2u(math.log(2.0)):#x}, v{L_+i}")
        for i in range(8): a(f"v_min_f32 v{E+i}, {f2u(1e37):#x}, v{E+i}")
        for i in range(8): a(f"v_fmac_f32 v{E+i}, v{E+i}, v{L_+i}")
        for i in range(8): a(f"v_add_f32 v{E+i}, 1.0, v{E+i}")
        for i in range(8): a(f"v_rcp_f32 v{R+i}, v{E+i}")
        for i in range(8): a(f"v_mul_f32 v{L_+i}, v{X+i}, v{R+i}")
        for i in range(8): a(f"v_fma_f32 v{E+i}, -v{L_+i}, v{E+i}, v{X+i}")
        for i in range(8): a(f"v_fmac_f32 v{L_+i}, v{E+i}, v{R+i}")
        for i in range(4): a(f"v_cvt_pk_bf16_f32 v{4+i}, v{L_+2*i}, v{L_+2*i+1}")
        for q in (1, 2, 3):
            for i in range(4):
                a(f"v_mov_b32_dpp v{4+4*q+i}, v{4+i} row_shl:{4*q} row_mask:0xf bank_mask:0xf")
    def mod_rest(T, extra, tag, arrive):
        for ks in range(4):
            a(f"s_waitcnt vmcnt({extra + 8*(3-ks)})")
            for c in range(4):
                for t in range(4):
                    r = 32 + ks * 16
                    a(f"v_perm_b32 v{T+c*4+t}, v{r+2*(2*t+1)+(c>>1)}, v{r+2*(2*t)+(c>>1)}, s{62+(c&1)}")
            for c in range(4):
                d = T + 16 + 4 * c
                cc = "0" if ks == 0 else f"v[{d}:{d+3}]"
                a(f"v_mfma_f32_16x16x32_bf16 v[{d}:{d+3}], v[{4+4*ks}:{7+4*ks}], v[{T+c*4}:{T+c*4+3}], {cc}")
        a("s_lshl_b32 s10, s7, 10")
        a("v_lshl_add_u32 v25, v31, 6, s10")
        a("s_mov_b64 exec, 0xffff")
        for c in range(4):
            a(f"ds_write_b128 v25, v[{T+16+4*c}:{T+19+4*c}] offset:{L_MODP+16*c}")
        a("s_mov_b64 exec, 1")
        a("v_mov_b32 v26, 0"); a("v_mov_b32 v27, 1")
        a(f"ds_add_rtn_u32 v26, v26, v27 offset:{L_CNT}")
        a("s_mov_b64 exec, -1")
        a("v_lshlrev_b32 v25, 6, v31")
        a("v_lshl_add_u32 v25, v30, 2, v25")
        a(f"v_add_u32 v25, {L_MODP}, v25")
        a("v_add_u32 v24, 2048, v25")
        a("s_waitcnt lgkmcnt(0)")
        a("v_readfirstlane_b32 s10, v26")
        a("s_cmp_lg_u32 s10, 3")
        a(f"s_cbranch_scc1 L_{tag}end")
        for c in range(4):
            a(f"ds_read2st64_b32 v[{4+2*c}:{5+2*c}], v25 offset0:0 offset1:4")
            a(f"ds_read2st64_b32 v[{12+2*c}:{13+2*c}], v24 offset0:0 offset1:4")
            if c < 3:
                a("v_add_u32 v25, 16, v25"); a("v_add_u32 v24, 16, v24")
        a(f"v_mul_u32_u24 v2, {MG_B}, v30")
        a("v_lshl_add_u32 v2, v31, 4, v2")
        a("s_lshl_b32 s10, s13, 8")
        a(f"s_add_u32 s10, s10, {WS_MG}")
        a("s_lshr_b32 s11, s13, 3")
        a("s_waitcnt lgkmcnt(0)")
        for c in range(4):
            a(f"v_add_f32 v{4+2*c}, v{4+2*c}, v{5+2*c}"); a(f"v_add_f32 v{12+2*c}, v{12+2*c}, v{13+2*c}")
        for c in range(4): a(f"v_add_f32 v{20+c}, v{4+2*c}, v{12+2*c}")
        a("s_cmp_eq_u32 s11, 1")
        a(f"s_cbranch_scc1 L_{tag}one")
        a("s_cmp_lg_u32 s11, 4")
        a(f"s_cbranch_scc1 L_{tag}st")
        a(f"L_{tag}one:")
        rndn(20, 4, 4)
        for c in range(4): a(f"v_add_f32 v{20+c}, 1.0, v{20+c}")
        a(f"L_{tag}st:")
        a("v_cvt_pk_bf16_f32 v4, v20, v21"); a("v_mov_b32 v5, s56")
        a("v_cvt_pk_bf16_f32 v6, v22, v23"); a("v_mov_b32 v7, s56")
        a(f"buffer_store_dwordx4 v[4:7], v2, {sw}, s10 offen sc1")
        if not arrive: ts(1)
        a(f"L_{tag}end:")
    def warm_code(v, n0, n1):
        a("s_getpc_b64 s[10:11]")
        lab = a.label("L_pc")
        a(f"{lab}:")
        a(f"s_sub_u32 s10, s10, {lab}-L_entry")
        a("s_subb_u32 s11, s11, 0")
        a(f"v_lshlrev_b32 v{v}, 7, v0")
        if n0: a(f"v_add_u32 v{v}, {n0*8192}, v{v}")
        for i in range(n0, n1):
            a(f"v_cmp_gt_u32 vcc, L_exit-L_entry, v{v}")
            a("s_and_saveexec_b64 s[64:65], vcc")
            skip = a.label("L_wsk")
            a(f"s_cbranch_execz {skip}")
            a(f"global_load_dword v{v+1}, v{v}, s[10:11]")
            a(f"{skip}:")
            a("s_mov_b64 exec, s[64:65]")
            a(f"v_add_u32 v{v}, 8192, v{v}")

    a("L_service:")
    if prio: a(f"s_setprio {prio}")
    a("s_sub_u32 s7, s3, 4")
    a("s_mov_b32 s62, 0x05040100"); a("s_mov_b32 s63, 0x07060302")
    a("v_mov_b32 v4, 0"); a("v_mov_b32 v5, 0"); a("v_mov_b32 v6, 0"); a("v_mov_b32 v7, 0")
    a("v_mov_b32 v8, -1"); a("v_mov_b32 v9, -1"); a("v_mov_b32 v10, -1"); a("v_mov_b32 v11, -1")
    a(f"ds_write_b128 v4, v[4:7] offset:{L_CNT}")
    a(f"ds_write_b128 v4, v[4:7] offset:{L_CNT+16}")
    a(f"ds_write_b128 v4, v[8:11] offset:{L_F}")
    a("s_waitcnt lgkmcnt(0)")
    ts(0)
    a("s_load_dword s56, s[42:43], 0")
    srd(SW, P_WS, WS_END)
    def perms(ks):
        for c in range(8):
            for t in range(4):
                a(f"v_perm_b32 v{RG(ks)+c*4+t}, v{RG(ks+1)+4*(2*t+1)+(c>>1)}, v{RG(ks+1)+4*(2*t)+(c>>1)}, s{62+(c&1)}")
    def wo_load(depth):
        srd(SA, P_WO, 4096 * 1024)
        a("v_lshlrev_b32 v1, 13, v30")
        a("v_lshl_add_u32 v1, v31, 4, v1")
        a("s_lshl_b32 s57, s4, 17")
        a("s_lshl_b32 s10, s7, 8")
        a("s_add_u32 s57, s57, s10")
        done = 0
        for i in range(32):
            if i >= depth: a(f"s_waitcnt vmcnt({depth-1})")
            ks, e = i >> 3, i & 7
            r = RG(ks + 1) + 4 * e
            if not nowo: a(f"buffer_load_dwordx4 v[{r}:{r+3}], v1, {sa}, s57 offen{QPOL}")
            a(f"s_add_u32 s57, s57, {1024 if e < 7 else 1024*25}")
            while (done + 1) * 8 <= i + 1 - depth:
                perms(done); done += 1
        while done < 4:
            a(f"s_waitcnt vmcnt({8*(3-done)})")
            perms(done); done += 1
    a("s_lshl_b32 s58, s100, 9")
    a(f"s_add_u32 s58, s58, {WS_Q}")
    a("s_cmp_eq_u32 s6, 0")
    a("s_cbranch_scc1 L_qwg")
    a("s_cmp_ge_u32 s2, 128")
    a("s_cbranch_scc1 L_rplain")
    a("s_cmp_ge_u32 s8, 6")
    a("s_cbranch_scc1 L_rplain")
    a("s_lshl_b32 s13, s8, 3")
    a("s_lshr_b32 s10, s2, 4")
    a("s_add_u32 s13, s13, s10")
    a("s_setprio 3")
    a("s_cmp_ge_u32 s13, 16")
    a("s_cbranch_scc1 L_noclear")
    a("s_lshl_b32 s10, s13, 2")
    a("s_add_u32 s10, s10, s7")
    a("s_mul_i32 s10, s10, 224")
    a(f"s_add_u32 s10, s10, {WS_X1}")
    a("v_lshlrev_b32 v2, 4, v0")
    a("s_mov_b64 exec, 0x3fff")
    a(f"buffer_store_dwordx4 v[4:7], v2, {sw}, s10 offen sc1")
    a("s_mov_b64 exec, -1")
    a("L_noclear:")
    mod_loads()
    a("s_waitcnt lgkmcnt(0)")
    a("s_barrier")
    make_tag()
    mod_silu(RG(0))
    mod_rest(RG(0), 0, "m1", False)
    a(f"s_setprio {prio}")
    a("s_branch L_rjoin")
    a("L_rplain:")
    a("s_waitcnt lgkmcnt(0)")
    a("s_barrier")
    make_tag()
    a("L_rjoin:")
    a("s_cmp_lg_u32 s7, 3")
    a("s_cbranch_scc1 L_rwo")
    a("s_lshl_b32 s58, s100, 9")
    a(f"s_add_u32 s58, s58, {WS_Q}")
    a("v_lshlrev_b32 v2, 3, v0")
    a(f"s_mov_b32 s15, {SPIN}")
    a("L_qpoll:")
    a("s_sleep 8")
    a(f"buffer_load_dwordx2 v[4:5], v2, {sw}, s58 offen sc1")
    a("s_waitcnt vmcnt(0)")
    a("v_cmp_ne_u32 vcc, s56, v5")
    a("s_cbranch_vccz L_qgot")
    spin_tail(15, "L_qpoll")
    a("L_qgot:")
    a("v_lshlrev_b32 v2, 2, v0")
    a("v_mov_b32 v5, 1")
    a("v_mov_b32 v6, 0")
    a(f"ds_write_b32 v2, v4 offset:{L_Q}")
    a(f"ds_write_b32 v6, v5 offset:{L_CNT+20}")
    ts(4)
    a("s_branch L_rwo2")
    a("L_rwo:")
    if pf:
        a("s_cmp_eq_u32 s7, 0")
        a(f"s_cselect_b32 s{SA}, s{P_WG}, s{P_WU}"); a(f"s_cselect_b32 s{SA+1}, s{P_WG+1}, s{P_WU+1}")
        a("s_cmp_eq_u32 s7, 2")
        a(f"s_cselect_b32 s{SA}, s{P_WD}, s{SA}"); a(f"s_cselect_b32 s{SA+1}, s{P_WD+1}, s{SA+1}")
        a(f"s_mov_b32 s{SA+2}, {512*2752}"); a(f"s_mov_b32 s{SA+3}, 0x20000")
        a("v_lshlrev_b32 v2, 4, v0")
        a("s_mul_i32 s10, s100, 11008")
        for i in range(11):
            if i >= 4: a("s_waitcnt vmcnt(3)")
            a(f"buffer_load_dwordx4 v[{64+4*(i&3)}:{67+4*(i&3)}], v2, {sa}, s10 offen")
            a("s_add_u32 s10, s10, 1024")
    a("L_rwo2:")
    wo_load(DWR)
    a("s_branch L_wodone")
    a("L_qwg:")
    a("v_lshlrev_b32 v1, 16, v30")
    a("v_lshl_add_u32 v1, v31, 4, v1")
    srd(SA, P_WQ, 512 * 8192)
    a("s_lshl_b32 s57, s7, 20")
    a("s_lshl_b32 s10, s4, 8")
    a("s_add_u32 s57, s57, s10")
    def wq_issue(i):
        ks, e = i >> 3, i & 7
        r = RG(ks + 1) + 4 * e
        if not nowq: a(f"buffer_load_dwordx4 v[{r}:{r+3}], v1, {sa}, s57 offen{QPOL}")
        a(f"s_add_u32 s57, s57, {8192 if e < 7 else 8192*25}")
    for i in range(DW): wq_issue(i)
    a("s_waitcnt lgkmcnt(0)")
    a("s_barrier")
    make_tag()
    srd(SB, P_X, 4096)
    a("v_lshlrev_b32 v2, 4, v0")
    a("s_lshl_b32 s10, s5, 10")
    a(f"buffer_load_dwordx4 v[32:35], v2, {sb_}, s10 offen")
    a("v_lshlrev_b32 v2, 2, v0")
    a("s_lshl_b32 s11, s7, 8")
    a("s_add_u32 s10, s10, s11")
    a(f"buffer_load_dword v36, v2, {sb_}, s10 offen")
    if warm:
        a("s_cmp_lg_u32 s7, 3")
        a("s_cbranch_scc1 L_nowarm1")
        warm_code(60, 0, 4)
        a("L_nowarm1:")
    done = 0
    for i in range(DW, 32):
        a(f"s_waitcnt vmcnt({DW-1})")
        wq_issue(i)
        while (done + 1) * 8 <= i + 1 - DW:
            perms(done); done += 1
    a(f"s_waitcnt vmcnt({min(DW, 32-DW)})")
    a("v_lshlrev_b32 v2, 3, v0")
    a(f"s_mul_i32 s10, s5, {MG_B}")
    a("s_lshl_b32 s11, s7, 9")
    a("s_add_u32 s10, s10, s11")
    a(f"s_add_u32 s10, s10, {WS_MG}")
    a(f"buffer_load_dwordx2 v[4:5], v2, {sw}, s10 offen sc1")
    a(f"buffer_load_dwordx2 v[6:7], v2, {sw}, s10 offen offset:2048 sc1")
    for i in range(4):
        a(f"v_lshlrev_b32 v{40+2*i}, 16, v{32+i}"); a(f"v_and_b32 v{41+2*i}, 0xffff0000, v{32+i}")
    ln_stats(40, 48, 56, 57, 58)
    a("v_rcp_f32 v57, v57")
    a("v_lshlrev_b32 v38, 16, v36"); a("v_and_b32 v39, 0xffff0000, v36")
    a("v_sub_f32 v38, v38, v56"); a("v_sub_f32 v39, v39, v56")
    rndn(38, 2, 58)
    a("v_mul_f32 v38, v38, v57"); a("v_mul_f32 v39, v39, v57")
    rndn(38, 2, 58)
    a("s_lshl_b32 s11, s7, 8")
    a(f"s_add_u32 s11, s11, {L_H1}")
    a("v_lshl_add_u32 v28, v0, 2, s11")
    a("v_lshl_add_u32 v29, v30, 4, s11")
    while done < 4:
        a(f"s_waitcnt vmcnt({2 + 8*(3-done)})")
        perms(done); done += 1
    a(f"s_mov_b32 s15, {SPIN}")
    ts(2)
    a("s_branch L_hchk")
    a("L_hpoll:")
    a(f"buffer_load_dwordx2 v[4:5], v2, {sw}, s10 offen sc1")
    a(f"buffer_load_dwordx2 v[6:7], v2, {sw}, s10 offen offset:2048 sc1")
    a("L_hchk:")
    a("s_waitcnt vmcnt(0)")
    a("v_xor_b32 v8, s56, v5"); a("v_xor_b32 v9, s56, v7")
    a("v_or_b32 v8, v8, v9")
    a("v_cmp_ne_u32 vcc, 0, v8")
    a("s_cbranch_vccz L_hok")
    a("s_sleep 8")
    spin_tail(15, "L_hpoll")
    a("L_hok:")
    ts(3)
    a("v_lshlrev_b32 v8, 16, v6"); a("v_and_b32 v9, 0xffff0000, v6")
    a("v_mul_f32 v8, v8, v38"); a("v_mul_f32 v9, v9, v39")
    a("v_lshlrev_b32 v10, 16, v4"); a("v_and_b32 v11, 0xffff0000, v4")
    rndn(8, 2, 12)
    a("v_add_f32 v8, v8, v10"); a("v_add_f32 v9, v9, v11")
    a("v_cvt_pk_bf16_f32 v8, v8, v9")
    a("ds_write_b32 v28, v8")
    for ks in range(4):
        a(f"ds_read_b128 v[{12+4*ks}:{15+4*ks}], v29 offset:{ks*64}")
    def gemv32():
        for ks in range(4):
            a(f"s_waitcnt lgkmcnt({3-ks})")
            for c in range(8):
                cc = "0" if ks == 0 else f"v[{ACC+4*c}:{ACC+4*c+3}]"
                a(f"v_mfma_f32_16x16x32_bf16 v[{ACC+4*c}:{ACC+4*c+3}], v[{12+4*ks}:{15+4*ks}], v[{RG(ks)+4*c}:{RG(ks)+4*c+3}], {cc}")
    a("s_lshl_b32 s10, s7, 9")
    a("v_lshl_add_u32 v2, v31, 5, s10")
    gemv32()
    for c in range(0, 8, 2):
        a(f"ds_write2_b32 v2, v{ACC+4*c}, v{ACC+4*c+4} offset0:{c} offset1:{c+1}")
    a("v_mov_b32 v4, 0"); a("v_mov_b32 v5, 1")
    a("s_mov_b64 exec, 1")
    a(f"ds_add_rtn_u32 v6, v4, v5 offset:{L_CNT+16}")
    a("s_mov_b64 exec, -1")
    a("v_lshlrev_b32 v2, 3, v0")
    a("v_lshlrev_b32 v3, 2, v0")
    a("s_waitcnt lgkmcnt(0)")
    a("v_readfirstlane_b32 s10, v6")
    a("s_cmp_lg_u32 s10, 3")
    a("s_cbranch_scc1 L_qdone")
    for w in range(4):
        a(f"ds_read_b64 v[{8+2*w}:{9+2*w}], v2 offset:{L_QP + w*512}")
    a("s_waitcnt lgkmcnt(0)")
    a("v_add_f32 v8, v8, v10"); a("v_add_f32 v9, v9, v11"); a("v_add_f32 v12, v12, v14"); a("v_add_f32 v13, v13, v15")
    a("v_add_f32 v8, v8, v12"); a("v_add_f32 v9, v9, v13")
    a("v_cvt_pk_bf16_f32 v8, v8, v9")
    a("v_mov_b32 v9, s56")
    a(f"buffer_store_dwordx2 v[8:9], v2, {sw}, s58 offen sc1")
    a(f"ds_write_b32 v3, v8 offset:{L_Q}")
    a(f"ds_write_b32 v4, v5 offset:{L_CNT+20}")
    ts(4)
    a("L_qdone:")
    wo_load(DWO)
    a("L_wodone:")
    a("s_cmp_lt_u32 s101, 43")
    a("s_cselect_b32 s12, 1, 0")
    ts(5)
    G_OFF, D_OFF, F_OFF = L_STG, L_STG + 65536, L_STG + 98304
    a("s_cmp_eq_u32 s12, 0")
    a("s_cbranch_scc1 L_noffn")
    lds_wait(L_CNT + 12, 4, "kdone")
    a(f"s_setprio {fprio}")
    a("s_mov_b32 s13, s101")
    srd(SA, P_WG, 512 * 2752); srd(SB, P_WU, 512 * 2752)
    a("v_lshrrev_b32 v2, 2, v0")
    a("v_mul_u32_u24 v2, 2752, v2")
    a("v_and_b32 v3, 3, v0")
    a("v_lshl_add_u32 v2, v3, 4, v2")
    a("s_lshl_b32 s10, s13, 6")
    a(f"s_mul_i32 s11, s7, {128*2752}")
    a("s_add_u32 s10, s10, s11")
    a("s_lshl_b32 s14, s7, 13")
    a(f"s_add_u32 s14, s14, {G_OFF}")
    for i in range(8):
        for m, s in enumerate((sa, sb_)):
            a(f"s_add_u32 m0, s14, {m*32768 + i*1024}")
            if not noffn: a(f"buffer_load_dwordx4 v2, {s}, s10 offen{WP} lds")
        a(f"s_add_u32 s10, s10, {16*2752}")
        a(f"s_waitcnt vmcnt({DF_-2})")
    srd(SA, P_WD, 1376 * 1024)
    a("v_lshlrev_b32 v2, 10, v30")
    a("v_lshl_add_u32 v2, v31, 4, v2")
    a("s_lshl_b32 s10, s13, 15")
    a("s_lshl_b32 s11, s7, 8")
    a("s_add_u32 s10, s10, s11")
    a(f"s_add_u32 s14, s14, {D_OFF - G_OFF}")
    for i in range(8):
        a(f"s_add_u32 m0, s14, {i*1024}")
        if not noffn: a(f"buffer_load_dwordx4 v2, {sa}, s10 offen{WP} lds")
        a("s_add_u32 s10, s10, 4096")
        a(f"s_waitcnt vmcnt({DF_-1})")
    a("s_waitcnt vmcnt(0)")
    a(f"s_setprio {prio}")
    a("v_mov_b32 v4, 0"); a("v_mov_b32 v5, 1")
    a("s_mov_b64 exec, 1")
    a(f"ds_add_u32 v4, v5 offset:{L_CNT+8}")
    a("s_mov_b64 exec, -1")
    a("v_lshlrev_b32 v2, 11, v30")
    a("v_lshl_add_u32 v2, v31, 1, v2")
    a("v_add_u32 v2, s14, v2")
    a(f"s_add_u32 s14, s14, {F_OFF - D_OFF}")
    a("v_lshl_add_u32 v29, v0, 4, s14")
    for i in range(8):
        for e in range(8):
            a(f"ds_read_u16 v{4+e}, v2 offset:{e*256 + i*32}")
        a("s_waitcnt lgkmcnt(0)")
        for t in range(4):
            a(f"v_lshl_or_b32 v{12+t}, v{5+2*t}, 16, v{4+2*t}")
        a(f"ds_write_b128 v29, v[12:15] offset:{i*1024}")
    lds_wait(L_CNT + 8, 4, "gu")
    a("v_bfe_u32 v2, v31, 1, 1")
    a("v_lshlrev_b32 v2, 15, v2")
    a("v_lshl_add_u32 v2, v30, 9, v2")
    a("v_lshrrev_b32 v3, 2, v31")
    a("v_lshl_add_u32 v2, v3, 2, v2")
    a("v_and_b32 v3, 1, v31")
    a("v_lshl_add_u32 v2, v3, 1, v2")
    a("s_lshl_b32 s10, s7, 4")
    a(f"s_add_u32 s10, s10, {G_OFF}")
    a("v_add_u32 v2, s10, v2")
    for ks in range(16):
        for e in range(8):
            a(f"ds_read_u16 v{4+e}, v2 offset:{(ks*32+e)*64}")
        a("s_waitcnt lgkmcnt(0)")
        for t in range(4):
            a(f"v_lshl_or_b32 v{32+ks*4+t}, v{5+2*t}, 16, v{4+2*t}")
    a("v_mov_b32 v4, 0"); a("v_mov_b32 v5, 1")
    a("s_mov_b64 exec, 1")
    a(f"ds_add_u32 v4, v5 offset:{L_CNT+24}")
    a("s_mov_b64 exec, -1")
    srd(SB, P_X, 4096)
    a("v_lshlrev_b32 v2, 5, v0")
    a("v_lshlrev_b32 v3, 4, v0")
    a(f"s_mul_i32 s10, s7, {MG_B}")
    a(f"s_add_u32 s10, s10, {WS_MG + 2*2048}")
    a("s_add_u32 s11, s10, 4096")
    a("s_lshl_b32 s14, s7, 10")
    a(f"buffer_load_dwordx4 v[248:251], v3, {sb_}, s14 offen")
    a(f"s_mov_b32 s15, {SPIN}")
    a("L_sbpoll:")
    a(f"buffer_load_dwordx4 v[224:227], v2, {sw}, s10 offen sc1")
    a(f"buffer_load_dwordx4 v[228:231], v2, {sw}, s10 offen offset:16 sc1")
    a(f"buffer_load_dwordx4 v[232:235], v2, {sw}, s10 offen offset:2048 sc1")
    a(f"buffer_load_dwordx4 v[236:239], v2, {sw}, s10 offen offset:2064 sc1")
    a(f"buffer_load_dwordx4 v[240:243], v2, {sw}, s11 offen sc1")
    a(f"buffer_load_dwordx4 v[244:247], v2, {sw}, s11 offen offset:16 sc1")
    a("s_waitcnt vmcnt(0)")
    for i in range(6): a(f"v_bitop3_b32 v{12+i}, v{225+4*i}, v{227+4*i}, s56 bitop3:0x7e")
    a("v_or3_b32 v12, v12, v13, v14")
    a("v_or3_b32 v12, v12, v15, v16")
    a("v_or_b32 v12, v12, v17")
    a("v_cmp_ne_u32 vcc, 0, v12")
    a("s_cbranch_vccz L_sbok")
    a("s_sleep 16")
    spin_tail(15, "L_sbpoll")
    a("L_sbok:")
    lds_wait(L_CNT + 24, 4, "gudone")
    a(f"s_mul_i32 s10, s7, {PAR_B}")
    a(f"s_add_u32 s10, s10, {L_STG}")
    a("v_add_u32 v3, s10, v3")
    for i in range(4): a(f"v_mov_b32 v{4+i}, 0")
    for i in range(11): a(f"ds_write_b128 v3, v[4:7] offset:{i*1024}")
    a("s_mov_b64 exec, 0xffff")
    a(f"ds_write_b128 v3, v[4:7] offset:{11*1024}")
    a("s_mov_b64 exec, -1")
    a("v_lshl_add_u32 v2, v30, 4, v2")
    a("v_add_u32 v2, s10, v2")
    for p, src in ((0, [224, 226, 228, 230]), (1, [248, 249, 250, 251]), (2, None), (3, [240, 242, 244, 246]), (4, [232, 234, 236, 238])):
        for i in range(4):
            if src is None:
                a(f"v_mov_b32 v{12+2*i}, 1.0"); a(f"v_mov_b32 v{13+2*i}, 1.0")
            else:
                a(f"v_lshlrev_b32 v{12+2*i}, 16, v{src[i]}"); a(f"v_and_b32 v{13+2*i}, 0xffff0000, v{src[i]}")
        a(f"ds_write_b128 v2, v[12:15] offset:{p*2304}")
        a(f"ds_write_b128 v2, v[16:19] offset:{p*2304+16}")
        a("s_waitcnt lgkmcnt(0)")
    a("v_mov_b32 v4, 0"); a("v_mov_b32 v5, 1")
    a("s_mov_b64 exec, 1")
    a(f"ds_add_u32 v4, v5 offset:{L_CNT+28}")
    a("s_mov_b64 exec, -1")
    a("L_noffn:")
    ts(6)
    a("s_cmp_lg_u32 s7, 0")
    a("s_cbranch_scc1 L_noml")
    lds_wait(L_CNT + 4, 4, "mlw")
    a("v_and_b32 v5, 3, v0")
    a("v_lshlrev_b32 v6, 3, v5")
    a(f"ds_read_b64 v[8:9], v6 offset:{L_ML}")
    a(f"s_mov_b32 s59, {LOG2E:#x}")
    a("s_waitcnt lgkmcnt(0)")
    a("v_max_f32_dpp v10, v8, v8 quad_perm:[1,0,3,2] row_mask:0xf bank_mask:0xf")
    a("v_max_f32_dpp v10, v10, v10 quad_perm:[2,3,0,1] row_mask:0xf bank_mask:0xf")
    a("v_sub_f32 v11, v8, v10")
    a("v_mul_f32 v11, s59, v11")
    a("v_exp_f32 v11, v11")
    a("v_mul_f32 v11, v11, v9")
    a("v_add_f32_dpp v11, v11, v11 quad_perm:[1,0,3,2] row_mask:0xf bank_mask:0xf")
    a("v_add_f32_dpp v11, v11, v11 quad_perm:[2,3,0,1] row_mask:0xf bank_mask:0xf")
    a("s_lshl_b32 s10, s2, 7")
    a(f"s_add_u32 s10, s10, {WS_ML}")
    a("v_mov_b32 v16, v10"); a("v_mov_b32 v17, s56"); a("v_mov_b32 v18, v11"); a("v_mov_b32 v19, s56")
    a("s_mov_b64 exec, 1")
    a(f"buffer_store_dwordx4 v[16:19], v4, {sw}, s10 offen sc1")
    a("s_mov_b64 exec, -1")
    a("s_xor_b32 s10, s10, 1024")
    a(f"s_mov_b32 s15, {SPIN}")
    a("L_mlp:")
    a("s_sleep 40")
    a(f"buffer_load_dwordx4 v[20:23], v4, {sw}, s10 offen sc1")
    a("s_waitcnt vmcnt(0)")
    a("v_bitop3_b32 v14, v21, v23, s56 bitop3:0x7e")
    a("v_cmp_eq_u32 vcc, 0, v14")
    a("s_cbranch_vccnz L_mlpok")
    spin_tail(15, "L_mlp")
    a("L_mlpok:")
    a("v_mov_b32 v12, v20"); a("v_mov_b32 v13, v22")
    a("v_max_f32 v14, v10, v12")
    a("v_sub_f32 v10, v10, v14"); a("v_sub_f32 v12, v12, v14"); a("v_sub_f32 v8, v8, v14")
    a("v_mul_f32 v10, s59, v10"); a("v_mul_f32 v12, s59, v12"); a("v_mul_f32 v8, s59, v8")
    a("v_exp_f32 v10, v10"); a("v_exp_f32 v12, v12"); a("v_exp_f32 v8, v8")
    a("v_mul_f32 v10, v10, v11")
    a("v_fmac_f32 v10, v12, v13")
    a("v_rcp_f32 v10, v10")
    a("v_mul_f32 v8, v8, v10")
    a("v_lshlrev_b32 v6, 2, v5")
    a(f"ds_write_b32 v6, v8 offset:{L_F}")
    a("s_waitcnt lgkmcnt(0)")
    a("L_noml:")
    if warm:
        a("s_cmp_lg_u32 s7, 3")
        a("s_cbranch_scc1 L_nowarm2")
        warm_code(4, 0, 4)
        a("s_waitcnt vmcnt(0)")
        a("L_nowarm2:")
    a("v_and_b32 v2, 7, v31")
    a(f"v_mul_u32_u24 v2, {OR_STRIDE}, v2")
    a("v_lshl_add_u32 v2, v30, 4, v2")
    a("s_mul_i32 s11, s7, 640")
    a(f"s_add_u32 s11, s11, {L_MODP}")
    a("v_mov_b32 v4, 0"); a("v_mov_b32 v5, 0"); a("v_mov_b32 v6, 0"); a("v_mov_b32 v7, 0"); a("v_mov_b32 v8, 1.0")
    a("v_mov_b32 v9, s11")
    a("ds_write_b128 v9, v[4:7] offset:512")
    a("ds_write_b32 v9, v8 offset:528")
    a("v_lshlrev_b32 v3, 5, v31")
    a("v_lshl_add_u32 v3, v30, 4, v3")
    a("v_add_u32 v3, s11, v3")
    a("v_lshrrev_b32 v4, 2, v0")
    a("v_sub_u32 v4, v0, v4")
    a("v_lshlrev_b32 v4, 2, v4")
    a("v_and_b32 v5, 3, v0")
    a("v_cmp_eq_u32 vcc, 3, v5")
    a("v_mov_b32 v6, 528")
    a("s_mov_b64 s[64:65], vcc")
    a("v_cndmask_b32 v1, v4, v6, vcc")
    a("v_add_u32 v1, s11, v1")
    a(f"s_mul_i32 s10, s5, {XA_B}")
    a("s_mul_i32 s11, s7, 704")
    a("s_add_u32 s10, s10, s11")
    a(f"s_add_u32 s10, s10, {WS_X1}")
    a("v_mov_b32 v28, 0xff")
    a("s_waitcnt vmcnt(0) lgkmcnt(0)")
    a("s_barrier")
    ts(7)
    for ks in range(4):
        a(f"ds_read_b128 v[{12+4*ks}:{15+4*ks}], v2 offset:{L_OR + ks*64}")
    gemv32()
    for c in range(8):
        a(f"v_add_f32 v{ACC+4*c}, v{ACC+4*c}, v{ACC+4*c+1}")
        a(f"v_add_f32 v{ACC+4*c+2}, v{ACC+4*c+2}, v{ACC+4*c+3}")
        a(f"v_add_f32 v{4+c}, v{ACC+4*c}, v{ACC+4*c+2}")
    for c in range(4): a(f"v_permlane16_swap_b32 v{4+c}, v{8+c}")
    for c in range(4): a(f"v_add_f32 v{4+c}, v{4+c}, v{8+c}")
    a("s_mov_b32 exec_hi, 0")
    a("ds_write_b128 v3, v[4:7]")
    a("s_mov_b64 exec, -1")
    a("ds_read_b32 v8, v1")
    a("ds_read_b32 v9, v1 offset:192")
    a("ds_read_b32 v10, v1 offset:384")
    a("v_lshlrev_b32 v11, 2, v0")
    a("s_waitcnt lgkmcnt(2)")
    a(f"buffer_atomic_add_f32 v8, v11, {sw}, s10 offen sc1")
    a("s_waitcnt lgkmcnt(0)")
    a("v_cndmask_b32 v9, v9, v8, s[64:65]")
    a("v_cndmask_b32 v10, v10, v8, s[64:65]")
    a(f"buffer_atomic_add_f32 v9, v11, {sw}, s10 offen offset:256 sc1")
    a("s_mov_b32 exec_hi, 0xffff")
    a(f"buffer_atomic_add_f32 v10, v11, {sw}, s10 offen offset:512 sc1")
    a("s_mov_b64 exec, -1")
    ts(8)
    a("s_cmp_eq_u32 s12, 0")
    a("s_cbranch_scc1 L_done2")
    DF, HB = 160, 192
    for i in range(8):
        a(f"ds_read_b128 v[{DF+4*i}:{DF+4*i+3}], v29 offset:{i*1024}")
    for i in range(16): a(f"v_mov_b32 v{HB+i}, 0")
    a("v_and_b32 v24, 3, v31")
    a(f"v_mul_u32_u24 v1, {H2_STRIDE}, v24")
    a("v_lshl_add_u32 v1, v30, 4, v1")
    a("s_lshl_b32 s11, s7, 6")
    a("v_lshl_add_u32 v25, v31, 4, s11")
    a("v_lshl_add_u32 v25, v30, 2, v25")
    a("v_lshlrev_b32 v26, 6, v30")
    a("v_lshl_add_u32 v26, v24, 4, v26")
    a("v_lshlrev_b32 v27, 4, v0")
    a(f"s_mul_i32 s14, s13, {Y2S}")
    a("s_lshl_b32 s11, s7, 11")
    a("s_add_u32 s14, s14, s11")
    a(f"s_add_u32 s14, s14, {WS_Y2}")
    K1 = -2.0 * math.sqrt(2.0 / math.pi) * 1.4426950408889634
    a(f"s_mov_b32 s59, {f2u(K1 * 0.044715):#x}")
    a(f"v_mov_b32 v23, {f2u(K1):#x}")
    a("v_mov_b32 v21, 0")
    a("v_mov_b32 v22, s56")
    a("s_lshl_b32 s10, s13, 7")
    a(f"s_add_u32 s10, s10, {WS_C2}")
    a("s_waitcnt lgkmcnt(0)")
    a("s_barrier")
    ts(9)
    h2off = lambda ks: L_H2 + (ks >> 2) * 272 + (ks & 3) * 64
    for ks in range(15):
        a(f"ds_read_b128 v[{96+4*ks}:{99+4*ks}], v1 offset:{h2off(ks)}")
    for ks in range(16):
        a(f"s_waitcnt lgkmcnt({14 if ks < 2 else 15-ks})")
        d = 4 + 4 * (ks & 1)
        cc = "0" if ks < 2 else f"v[{d}:{d+3}]"
        a(f"v_mfma_f32_16x16x32_bf16 v[{d}:{d+3}], v[{32+4*ks}:{35+4*ks}], v[{96+4*ks}:{99+4*ks}], {cc}")
        if ks == 0: a(f"ds_read_b128 v[156:159], v1 offset:{h2off(15)}")
        if ks == HM2:
            a("s_cmp_lg_u32 s7, 0")
            a("s_cbranch_scc1 L_nohint2")
            a("s_mov_b64 exec, 1")
            a(f"buffer_store_dword v22, v21, {sw}, s10 offen sc1")
            a("s_mov_b64 exec, -1")
            a("L_nohint2:")
    for i in range(4): a(f"v_add_f32 v{4+i}, v{4+i}, v{8+i}")
    rndn(4, 4, 12)
    for i in range(2): a(f"v_mul_f32 v{8+i}, v{4+i}, v{4+i}")
    for i in range(2): a(f"v_fma_f32 v{8+i}, v{8+i}, s59, v23")
    for i in range(2): a(f"v_mul_f32 v{8+i}, v{8+i}, v{4+i}")
    for i in range(2): a(f"v_exp_f32 v{8+i}, v{8+i}")
    for i in range(2): a(f"v_add_f32 v{8+i}, 1.0, v{8+i}")
    for i in range(2): a(f"v_rcp_f32 v{8+i}, v{8+i}")
    for i in range(2): a(f"v_mul_f32 v{8+i}, v{8+i}, v{4+i}")
    rndn(8, 2, 12)
    a("v_mul_f32 v8, v8, v6"); a("v_mul_f32 v9, v9, v7")
    a("v_cvt_pk_bf16_f32 v12, v8, v9")
    execm(0x000f000f)
    a(f"ds_write_b32 v25, v12 offset:{L_HH}")
    a("s_waitcnt lgkmcnt(0)")
    a("s_barrier")
    for q in range(4):
        if q: execm(0x000F000F << (4 * q))
        a(f"ds_read_b128 v[{HB+4*q}:{HB+4*q+3}], v26 offset:{L_HH}")
    a("s_mov_b64 exec, -1")
    for q in range(4):
        a(f"s_waitcnt lgkmcnt({3-q})")
        for u in range(2):
            d = 4 + 4 * u
            cc = "0" if q == 0 else f"v[{d}:{d+3}]"
            i = 4 * u + q
            a(f"v_mfma_f32_16x16x32_bf16 v[{d}:{d+3}], v[{DF+4*i}:{DF+4*i+3}], v[{HB+4*q}:{HB+4*q+3}], {cc}")
    for i in range(4): a(f"v_bfi_b32 v{4+i}, v28, s56, v{4+i}")
    a(f"buffer_store_dwordx4 v[4:7], v27, {sw}, s14 offen sc1")
    for i in range(4): a(f"v_bfi_b32 v{8+i}, v28, s56, v{8+i}")
    a(f"buffer_store_dwordx4 v[8:11], v27, {sw}, s14 offen offset:1024 sc1")
    a("s_add_u32 s10, s13, s7")
    a("s_cmp_lg_u32 s10, 0")
    a("s_cbranch_scc1 L_noepoch")
    a("s_mov_b64 exec, 1")
    a("v_mov_b32 v2, 0"); a("v_mov_b32 v3, s56")
    a(f"buffer_store_dword v3, v2, {sw}, 0 offen sc1")
    a("L_noepoch:")
    ts(10)
    a("L_done2:")
    fin()
    if debug:
        a("L_fin:")
        a("s_mov_b64 exec, 1")
        srd(SW, P_WS, WS_END)
        a("s_lshl_b32 s10, s2, 3")
        a("s_add_u32 s10, s10, s3")
        a("s_lshl_b32 s10, s10, 6")
        a(f"s_add_u32 s10, s10, {WS_TS}")
        a("v_mov_b32 v2, 0")
        for k in range(12):
            a(f"v_mov_b32 v3, s{72+2*k}")
            a(f"buffer_store_dword v3, v2, {sw}, s10 offen offset:{4*k}")
        a("s_getreg_b32 s11, hwreg(HW_REG_XCC_ID)")
        a("v_mov_b32 v3, s11")
        a(f"buffer_store_dword v3, v2, {sw}, s10 offen offset:60")
    a("L_exit:")
    a("s_endpgm")
    body = a.finish()
    txt = HEADER + f"; @launch grid=(256,1,1) block=(512,1,1) lds={L_END}\n"
    txt += f""".amdgcn_target "amdgcn-amd-amdhsa--gfx950"
.text
.globl {KN}
.p2align 8
.type {KN},@function
{KN}:
{body}.section .rodata,"a"
.p2align 6
.amdhsa_kernel {KN}
  .amdhsa_next_free_vgpr 256
  .amdhsa_next_free_sgpr 102
  .amdhsa_accum_offset 256
  .amdhsa_group_segment_fixed_size 0
  .amdhsa_kernarg_size 112
  .amdhsa_user_sgpr_count 2
  .amdhsa_user_sgpr_kernarg_segment_ptr 1
  .amdhsa_system_sgpr_workgroup_id_x 1
  .amdhsa_float_denorm_mode_32 3
.end_amdhsa_kernel
"""
    return txt

if __name__ == "__main__":
    out = sys.argv[1] if len(sys.argv) > 1 else "adaLN_cond__gqa_block_cached__glu_gated_geglu__decode.s"
    kw = {}
    for arg in sys.argv[2:]:
        k, v = arg.split("=")
        kw[k] = v if k.endswith("pol") else int(v)
    open(out, "w").write(gen(**kw))
    print("wrote", out)
```

```python
KN = "adaLN_cond__gqa_block_cached__glu_gated_geglu__decode_kernel"
s = open("adaLN_cond__gqa_block_cached__glu_gated_geglu__decode.s").read()
s = s.replace("; @launch grid=(256,1,1) block=(512,1,1) lds=163840\n",
  f"; @launch kernel={KN} grid=(256,1,1) block=(512,1,1) lds=163840\n; @launch kernel=probe_kernel grid=(1,1,1) block=(64,1,1) lds=0\n")
L = []; a = L.append
a(".p2align 8"); a("probe_kernel:")
a("s_cmp_lg_u32 s2, 0"); a("s_cbranch_scc1 P_end")
a("s_load_dwordx4 s[4:7], s[0:1], 8"); a("s_load_dwordx2 s[16:17], s[0:1], 96"); a("s_waitcnt lgkmcnt(0)")
a("s_mov_b64 exec, 1"); a("v_mov_b32 v1, 0"); a("v_mov_b32 v2, 0")
for bi in range(2):
    a(f"s_mov_b32 s8, s{4+2*bi}"); a(f"s_mov_b32 s9, s{5+2*bi}"); a(f"s_mov_b32 s10, {128<<20}"); a("s_mov_b32 s11, 0x20000")
    a("s_mov_b32 s21, 0x40000"); a("s_mov_b32 s22, 0"); a("s_mov_b32 s25, 0")
    a(f"P_l{bi}:")
    a("buffer_load_dword v4, v1, s[8:11], s21 offen offset:2048 nt"); a("s_waitcnt vmcnt(0)")
    a("s_mov_b32 s26, 0")
    for j in range(6):
        a(f"s_add_u32 s23, s21, {j*8192 + 4096}")
        a("s_memtime s[30:31]"); a("s_waitcnt lgkmcnt(0)")
        a("buffer_load_dword v4, v1, s[8:11], s23 offen nt"); a("s_waitcnt vmcnt(0)")
        a("s_memtime s[32:33]"); a("s_waitcnt lgkmcnt(0)")
        a("s_sub_u32 s32, s32, s30")
        a("s_add_u32 s26, s26, s32" if j % 2 == 0 else "s_sub_u32 s26, s26, s32")
    a("s_cmp_gt_i32 s26, 0"); a("s_cselect_b32 s27, 1, 0")
    a("s_and_b32 s28, s22, 31"); a("s_lshl_b32 s27, s27, s28"); a("s_or_b32 s25, s25, s27")
    a("s_add_u32 s22, s22, 1"); a("s_add_u32 s21, s21, 0x100000")
    a("s_and_b32 s28, s22, 31"); a("s_cmp_lg_u32 s28, 0"); a(f"s_cbranch_scc1 P_l{bi}")
    a("v_mov_b32 v3, s25"); a("global_store_dword v2, v3, s[16:17]"); a("v_add_u32 v2, 4, v2"); a("s_mov_b32 s25, 0")
    a("s_cmp_lt_u32 s22, 128"); a(f"s_cbranch_scc1 P_l{bi}")
a("s_getreg_b32 s28, hwreg(HW_REG_XCC_ID)")
for r in ("s28", "s4", "s6", "s26"):
    a(f"v_mov_b32 v3, {r}"); a("global_store_dword v2, v3, s[16:17]"); a("v_add_u32 v2, 4, v2")
a("P_end:"); a("s_endpgm")
s = s.replace('.section .rodata,"a"', "\n".join(L) + '\n.section .rodata,"a"')
s += """.p2align 6
.amdhsa_kernel probe_kernel
  .amdhsa_next_free_vgpr 8
  .amdhsa_next_free_sgpr 40
  .amdhsa_accum_offset 8
  .amdhsa_group_segment_fixed_size 0
  .amdhsa_kernarg_size 112
  .amdhsa_user_sgpr_count 2
  .amdhsa_user_sgpr_kernarg_segment_ptr 1
  .amdhsa_system_sgpr_workgroup_id_x 1
.end_amdhsa_kernel
"""
open("h2.s", "w").write(s)
```
